```python
import torch

def _softmax(x, axis=-1):
    return torch.softmax(x, dim=axis)
def _gelu(x):
    return torch.nn.functional.gelu(x, approximate="tanh")
def _silu(x):
    return torch.nn.functional.silu(x)
def _sigmoid(x):
    return torch.sigmoid(x)
def _layernorm(x, axis=-1, eps=1e-5):
    m = x.mean(dim=axis, keepdim=True)
    v = x.var(dim=axis, keepdim=True, unbiased=False)
    return (x - m) / torch.sqrt(v + eps)
def _scatter_add(tgt, idx, src, axis=0):
    return tgt.clone().index_add_(axis, idx, src)
def _segment_sum(src, seg, n):
    out = torch.zeros((n,) + src.shape[1:], dtype=src.dtype)
    return out.index_add_(0, seg, src)
def _pad(x, pw):
    flat = tuple(v for pair in reversed(pw) for v in pair)
    return torch.nn.functional.pad(x, flat)

kernel_name = 'gated_mix__grouped_kv_mqa__moe_arch_mod__prompt'

def setup_inputs():

    _w = (lambda a: (lambda t: t.to(torch.bfloat16) if t.is_floating_point() else t)(torch.as_tensor(a)))
    def _A_setup():
        B, S, D, H = 1, 2048, 640, 32
        Dh = D // H
        return {
            "x": _w((lambda *s: torch.randn(*s, dtype=torch.bfloat16) * 0.05)(B, S, D)),
            "wq": _w((lambda *s: torch.randn(*s, dtype=torch.bfloat16) * 3.2)(D, H * Dh)),
            "wk": _w((lambda *s: torch.randn(*s, dtype=torch.bfloat16) * 3.2)(D, Dh)),
            "wv": _w((lambda *s: torch.randn(*s, dtype=torch.bfloat16) * 0.4)(D, Dh)),
            "wo": _w((lambda *s: torch.randn(*s, dtype=torch.bfloat16) * 0.4)(H * Dh, D)),
        }
    _A_in = _A_setup()

    def _B_setup():
        B, S, D, F, C = 1, 2048, 640, 1728, 1
        return {
            "x": _w((lambda *s: torch.randn(*s, dtype=torch.bfloat16) * 0.05)(B, S, D)),
            "w_r": _w((lambda *s: torch.randn(*s, dtype=torch.bfloat16) * 1.6)(D)),
            "w_gate": _w((lambda *s: torch.randn(*s, dtype=torch.bfloat16) * 0.8)(D, F)),
            "w_up": _w((lambda *s: torch.randn(*s, dtype=torch.bfloat16) * 0.8)(D, F)),
            "w_down": _w((lambda *s: torch.randn(*s, dtype=torch.bfloat16) * 0.8)(F, D)),
        }
    _B_in = _B_setup()

    return {
        "A_x": _A_in["x"],
        "A_wq": _A_in["wq"],
        "A_wk": _A_in["wk"],
        "A_wv": _A_in["wv"],
        "A_wo": _A_in["wo"],
        "B_x": _B_in["x"],
        "B_w_r": _B_in["w_r"],
        "B_w_gate": _B_in["w_gate"],
        "B_w_up": _B_in["w_up"],
        "B_w_down": _B_in["w_down"],
        "gate_w": _w((lambda *s: torch.randn(*s, dtype=torch.bfloat16) * 0.05)(640) * 16.0),
    }

def reference(A_x, A_wq, A_wk, A_wv, A_wo, B_x, B_w_r, B_w_gate, B_w_up, B_w_down, gate_w):
    def _A_ref(x, wq, wk, wv, wo):
        B, S, D = x.shape
        H = 32
        Dh = D // H
        q = (lambda x, *d: x.permute(*d))((x @ wq).reshape(B, S, H, Dh), 0, 2, 1, 3)
        k = x @ wk
        v = x @ wv
        scores = torch.einsum("bhqd,bkd->bhqk", q, k) * (Dh ** -0.5)
        p = _softmax(scores, axis=-1)
        o = torch.einsum("bhqk,bkd->bhqd", p, v)
        return (lambda x, *d: x.permute(*d))(o, 0, 2, 1, 3).reshape(B, S, H * Dh) @ wo

    def _B_ref(x, w_r, w_gate, w_up, w_down):
        B, S, D = x.shape
        C = 1
        r = x @ w_r
        idx = torch.argsort(-r, axis=-1)[:, :C]
        idx_e = (lambda x, n, axis: torch.repeat_interleave(x, n, dim=axis))(idx.reshape(B, C, 1), D, axis=2)
        x_sel = (lambda x, i, axis: torch.take_along_dim(x, i, dim=axis))(x, idx_e, axis=1)
        g = _silu(x_sel @ w_gate)
        u = x_sel @ w_up
        y = (g * u) @ w_down
        r_sel = _sigmoid((lambda x, i, axis: torch.take_along_dim(x, i, dim=axis))(r, idx, axis=1))
        y = y * r_sel.reshape(B, C, 1)
        b_off = (torch.arange(B) * S).reshape(B, 1)
        flat_idx = (idx + b_off).reshape(B * C)
        zero = (x * 0.0).reshape(B * S, D)
        upd = _scatter_add(zero, flat_idx, y.reshape(B * C, D), axis=0)
        return x + upd.reshape(B, S, D)

    x = A_x
    g = _sigmoid((x * gate_w).sum(-1, keepdims=True))
    a = _A_ref(x, A_wq, A_wk, A_wv, A_wo)
    b = _B_ref(x, B_w_r, B_w_gate, B_w_up, B_w_down)
    return g * a + (1 - g) * b
```

```python
import sys, math, struct
NAME = 'gated_mix__grouped_kv_mqa__moe_arch_mod__prompt'
L = []
def E(s=''):
    for x in s.split('\n'):
        x = x.strip()
        if x: L.append(x if x.endswith(':') or x.startswith('.') else '    ' + x)
def r(a, n): return f'v[{a}:{a+n-1}]'
def sr(a, n): return f's[{a}:{a+n-1}]'
def fbits(x): return '0x%08x' % struct.unpack('<I', struct.pack('<f', x))[0]

KA = dict(x=0, wq=8, wk=16, wv=24, wo=32, wr=48, wg=56, wu=64, wd=72, gw=80, out=88, dbg=96, ws=104)
WS_KV = 0; WS_Q = 0x40000; QWG = 12288; WS_O = 0x380000; WS_G = 0x600000; WS_KEY = 0x604000
WS_Z = 0x608000; Z_H = 0; Z_Y = 16384; Z_C1 = 36864; Z_C2 = 38912; Z_SIZE = 40960
WS_SIZE = 0x620000
XBYTES = 2048*640*2; WBYTES = 640*640*2
QSCALE = math.log2(math.e)/math.sqrt(20.0)
LOG2E = math.log2(math.e)
XSHIFT = 88.0
SPINMAX = 200000
sW, sTB, sJ, sNT, sKH = 4, 5, 6, 7, 3
vL = 255

def srd(d, p, nbytes):
    E(f's_mov_b32 s{d}, s{p}\ns_and_b32 s{d+1}, s{p+1}, 0xffff\ns_mov_b32 s{d+2}, {nbytes}\ns_mov_b32 s{d+3}, 0x20000')

def header(k):
    E(f'.globl {k}\n.p2align 8\n.type {k},@function\n{k}:')
    E(f's_cmp_ge_u32 s2, 256\ns_cbranch_scc1 {k}_end')

def ids():
    E(f'''v_lshrrev_b32 v1, 6, v0
    v_and_b32 v{vL}, 63, v0
    v_readfirstlane_b32 s{sW}, v1
    s_and_b32 s{sTB}, s2, 7
    s_lshl_b32 s{sTB}, s{sTB}, 2
    s_lshr_b32 s{sJ}, s2, 6
    s_or_b32 s{sTB}, s{sTB}, s{sJ}
    s_bfe_u32 s{sJ}, s2, 0x30003
    s_and_b32 s{sNT}, s{sW}, 3
    s_lshr_b32 s{sKH}, s{sW}, 2''')

XB = 0
AF = 40
ACC = 80
vT0, vT1, vT2, vT3, vT4, vT5 = 100, 101, 102, 103, 104, 105
vWo, vTr, vXo = 106, 107, 108
RX = 112
W_IMG = 0; EX_IMG = 102400; XCH = EX_IMG + 21*1024
LDS_P = XCH + 24576

def rowperm(dst, rho, tmp):
    E(f'''v_bfe_u32 v{dst}, v{rho}, 2, 2
    v_lshlrev_b32 v{dst}, 3, v{dst}
    v_lshrrev_b32 v{tmp}, 4, v{rho}
    v_lshl_add_u32 v{dst}, v{tmp}, 2, v{dst}
    v_and_b32 v{tmp}, 3, v{rho}
    v_add_u32 v{dst}, v{dst}, v{tmp}''')

def act_offsets():
    E(f'''s_lshl_b32 s40, s{sTB}, 6
    s_lshl_b32 s41, s{sNT}, 4
    s_add_u32 s40, s40, s41
    v_and_b32 v{vT0}, 15, v{vL}
    v_add_u32 v{vT0}, s40, v{vT0}
    v_mul_u32_u24 v{vXo}, 1280, v{vT0}
    v_lshrrev_b32 v{vT1}, 4, v{vL}
    v_lshl_add_u32 v{vXo}, v{vT1}, 4, v{vXo}
    s_mul_i32 s41, s{sKH}, 640
    v_add_u32 v{vXo}, s41, v{vXo}''')

def act_loads(S, mods=''):
    for ks in range(10):
        E(f'buffer_load_dwordx4 {r(XB+4*ks,4)}, v{vXo}, {sr(S,4)}, 0 offen offset:{64*ks} {mods}')

def w_pattern():
    E(f'''s_lshl_b32 s40, s{sW}, 6
    v_add_u32 v{vT0}, s40, v{vL}
    v_mul_u32_u24 v{vT1}, 6554, v{vT0}
    v_lshrrev_b32 v{vT1}, 16, v{vT1}
    v_mul_u32_u24 v{vT2}, 10, v{vT1}
    v_sub_u32 v{vT2}, v{vT0}, v{vT2}''')
    rowperm(vT3, vT1, vT4)
    E(f'''v_mul_u32_u24 v{vWo}, 1280, v{vT3}
    v_lshl_add_u32 v{vWo}, v{vT2}, 4, v{vWo}
    s_mul_i32 s40, s{sJ}, 160
    v_add_u32 v{vWo}, s40, v{vWo}''')

def w_dma(S, tag):
    E(f'''s_lshl_b32 s42, s{sW}, 10
    s_mov_b32 s43, 0
    {tag}_wl:
    s_mov_b32 m0, s42
    s_add_u32 s44, s43, 409600
    buffer_load_dwordx4 v{vWo}, {sr(S,4)}, s43 offen lds
    s_add_u32 m0, s42, 51200
    s_add_u32 s42, s42, 5120
    buffer_load_dwordx4 v{vWo}, {sr(S,4)}, s44 offen lds
    s_add_u32 s43, s43, 40960
    s_cmp_lt_u32 s43, 409600
    s_cbranch_scc1 {tag}_wl''')

def tr_base():
    E(f'''v_lshrrev_b32 v{vT0}, 2, v{vL}
    v_mul_u32_u24 v{vTr}, 160, v{vT0}
    v_and_b32 v{vT0}, 3, v{vL}
    v_lshl_add_u32 v{vTr}, v{vT0}, 3, v{vTr}
    s_mul_i32 s40, s{sKH}, 51200
    v_add_u32 v{vTr}, s40, v{vTr}''')

def gemm_stages(waits):
    def rd(st, ks, mt):
        a = AF + 20*st + 4*mt
        E(f'ds_read_b64_tr_b16 {r(a,2)}, v{vTr} offset:{ks*5120 + mt*32}')
        E(f'ds_read_b64_tr_b16 {r(a+2,2)}, v{vTr} offset:{ks*5120 + 2560 + mt*32}')
    def mm(st, ks, mt):
        c = '0' if ks == 0 else r(ACC+4*mt, 4)
        E(f'v_mfma_f32_16x16x32_bf16 {r(ACC+4*mt,4)}, {r(AF+20*st+4*mt,4)}, {r(XB+4*ks,4)}, {c}')
    for s in range(5):
        E(f's_waitcnt vmcnt({waits[s]})\ns_barrier')
        a, b = 2*s, 2*s+1
        for mt in range(5): rd(0, a, mt)
        for mt in range(5):
            rd(1, b, mt)
            E('s_waitcnt lgkmcnt(10)')
            mm(0, a, mt)
        for mt in range(5):
            E(f's_waitcnt lgkmcnt({2*(4-mt)})')
            mm(1, b, mt)

def exchange(tag, finish):
    E(f'''s_mul_i32 s40, s{sW}, 3072
    s_add_u32 s40, s40, {XCH}
    v_lshl_add_u32 v{vT0}, v{vL}, 4, s40
    s_xor_b32 s41, s{sW}, 4
    s_mul_i32 s41, s41, 3072
    s_add_u32 s41, s41, {XCH}
    v_lshl_add_u32 v{vT1}, v{vL}, 4, s41
    s_nop 4
    s_cmp_eq_u32 s{sKH}, 0
    s_cbranch_scc0 {tag}_x1''')
    for kh, (send, keep) in enumerate((((3,4),(0,1,2)), ((0,1,2),(3,4)))):
        if kh: E(f'{tag}_x1:')
        for i, mt in enumerate(send): E(f'ds_write_b128 v{vT0}, {r(ACC+4*mt,4)} offset:{1024*i}')
        E('s_waitcnt lgkmcnt(0)\ns_barrier')
        for i, mt in enumerate(keep): E(f'ds_read_b128 {r(RX+4*i,4)}, v{vT1} offset:{1024*i}')
        for i, mt in enumerate(keep):
            E(f's_waitcnt lgkmcnt({len(keep)-1-i})')
            for q in range(4): E(f'v_add_f32 v{ACC+4*mt+q}, v{ACC+4*mt+q}, v{RX+4*i+q}')
            finish(mt, i)
        if not kh: E(f's_branch {tag}_xe')
    E(f'{tag}_xe:')

def k_proj():
    k = 'proj_kernel'
    header(k)
    E(f'''s_load_dwordx8 s[8:15], s[0:1], 0
    s_load_dwordx2 s[16:17], s[0:1], {KA['wr']}
    s_load_dwordx2 s[18:19], s[0:1], {KA['gw']}
    s_load_dwordx2 s[20:21], s[0:1], {KA['ws']}''')
    ids(); act_offsets(); tr_base()
    SX, SWQ, SEX, SWS = 24, 28, 32, 36
    E('s_waitcnt lgkmcnt(0)')
    srd(SX, 8, XBYTES)
    act_loads(SX)
    srd(SWQ, 10, WBYTES); srd(SWS, 20, WS_SIZE)
    E(f'''s_bitcmp1_b32 s{sJ}, 0
    s_cselect_b32 s12, s14, s12
    s_cselect_b32 s13, s15, s13''')
    srd(SEX, 12, 25600)
    E(f'''s_cmp_eq_u32 s{sJ}, 4
    s_cbranch_scc0 p_norg
    v_and_b32 v{vT0}, 1, v{vL}
    v_cmp_eq_u32 vcc, 1, v{vT0}
    v_mov_b32 v{vT0}, s16
    v_mov_b32 v{vT1}, s17
    v_mov_b32 v{vT2}, s18
    v_mov_b32 v{vT3}, s19
    v_cndmask_b32 v{vT0}, v{vT0}, v{vT2}, vcc
    v_cndmask_b32 v{vT1}, v{vT1}, v{vT3}, vcc
    v_lshrrev_b32 v{vT2}, 4, v{vL}
    v_lshlrev_b32 v{vT2}, 4, v{vT2}
    s_mul_i32 s40, s{sKH}, 640
    v_add_u32 v{vT2}, s40, v{vT2}
    v_add_co_u32 v{vT0}, vcc, v{vT0}, v{vT2}
    s_nop 1
    v_addc_co_u32 v{vT1}, vcc, 0, v{vT1}, vcc''')
    for ks in range(10): E(f'global_load_dwordx4 {r(AF+4*ks,4)}, {r(vT0,2)}, off offset:{64*ks}')
    E('p_norg:')
    E(f's_cmp_lt_u32 s{sW}, 5\ns_cbranch_scc0 p_exdma')
    w_pattern(); w_dma(SWQ, 'p')
    E('s_waitcnt vmcnt(20)\ns_branch p_e0')
    E('p_exdma:')
    E(f's_cmp_lt_u32 s{sJ}, 4\ns_cbranch_scc0 p_zero')
    E(f'v_lshrrev_b32 v{vT1}, 1, v{vL}')
    rowperm(vT3, vT1, vT4)
    E(f'''v_mul_u32_u24 v{vWo}, 40, v{vT3}
    v_and_b32 v{vT0}, 1, v{vL}
    v_lshl_add_u32 v{vWo}, v{vT0}, 4, v{vWo}
    s_and_b32 s40, s{sJ}, 2
    s_lshl_b32 s40, s40, 2
    v_add_u32 v{vWo}, s40, v{vWo}
    s_sub_u32 s40, s{sW}, 5
    s_mul_i32 s43, s40, 1280
    s_lshl_b32 s42, s40, 10
    s_add_u32 s42, s42, {EX_IMG}
    p_el:
    s_mov_b32 m0, s42
    s_add_u32 s42, s42, 3072
    buffer_load_dwordx4 v{vWo}, {sr(SEX,4)}, s43 offen lds
    s_add_u32 s43, s43, 3840
    s_cmp_lt_u32 s43, {21*1280}
    s_cbranch_scc1 p_el
    s_branch p_exw
    p_zero:
    s_cmp_eq_u32 s2, 40
    s_cbranch_scc0 p_exw
    s_sub_u32 s40, s{sW}, 5
    s_lshl_b32 s40, s40, 10
    s_add_u32 s40, s40, {WS_Z}
    v_lshlrev_b32 v{vT0}, 4, v{vL}
    v_mov_b32 v{RX}, 0
    v_mov_b32 v{RX+1}, 0
    v_mov_b32 v{RX+2}, 0
    v_mov_b32 v{RX+3}, 0
    p_zl:
    buffer_store_dwordx4 {r(RX,4)}, v{vT0}, {sr(SWS,4)}, s40 offen
    s_add_u32 s40, s40, 3072
    s_cmp_lt_u32 s40, {WS_Z+Z_SIZE}
    s_cbranch_scc1 p_zl
    p_exw:
    s_waitcnt vmcnt(0)
    p_e0:''')
    E(f's_cmp_lt_u32 s{sJ}, 5\ns_cbranch_scc0 p_q')
    E('s_barrier')
    E(f's_cmp_eq_u32 s{sJ}, 4\ns_cbranch_scc1 p_mk')
    E(f's_mul_i32 s40, s{sKH}, 10240\ns_add_u32 s40, s40, {EX_IMG}\nv_lshl_add_u32 v{vT0}, v{vL}, 3, s40')
    for ks in range(10):
        E(f'ds_read_b64_tr_b16 {r(AF+4*ks,2)}, v{vT0} offset:{ks*1024}')
        E(f'ds_read_b64_tr_b16 {r(AF+4*ks+2,2)}, v{vT0} offset:{ks*1024+512}')
    E(f's_waitcnt lgkmcnt(0)\ns_bitcmp1_b32 s{sJ}, 0\ns_cbranch_scc0 p_mk')
    for ks in range(10):
        c = '0' if ks == 0 else r(ACC, 4)
        E(f'v_mfma_f32_16x16x32_bf16 {r(ACC,4)}, {r(XB+4*ks,4)}, {r(AF+4*ks,4)}, {c}')
    E('s_branch p_md\np_mk:')
    for ks in range(10):
        c = '0' if ks == 0 else r(ACC, 4)
        E(f'v_mfma_f32_16x16x32_bf16 {r(ACC,4)}, {r(AF+4*ks,4)}, {r(XB+4*ks,4)}, {c}')
    E(f'''p_md:
    s_lshl_b32 s40, s{sW}, 10
    s_add_u32 s40, s40, {XCH}
    v_lshl_add_u32 v{vT0}, v{vL}, 4, s40
    s_lshr_b32 s44, s{sTB}, 1
    s_mul_i32 s44, s44, 10240
    s_sub_u32 s45, s{sW}, 5
    s_nop 3
    ds_write_b128 v{vT0}, {r(ACC,4)}
    s_waitcnt lgkmcnt(0)
    s_barrier
    s_cmp_lt_u32 s45, 2
    s_cbranch_scc0 p_q
    s_cmp_eq_u32 s{sJ}, 4
    s_cbranch_scc1 p_frg
    s_cmp_eq_u32 s{sJ}, 2
    s_cbranch_scc1 p_fkt
    s_lshl_b32 s46, s{sTB}, 1
    s_add_u32 s46, s46, s45
    s_and_b32 s46, s46, 3
    s_lshl_b32 s47, s45, 11
    s_add_u32 s47, s47, {XCH}
    v_lshrrev_b32 v{vT2}, 5, v{vL}
    v_bfe_u32 v{vT3}, v{vL}, 4, 1
    v_and_b32 v{vT4}, 15, v{vL}
    s_cmp_eq_u32 s{sJ}, 0
    s_cbranch_scc0 p_fv''')
    E(f'''v_lshl_add_u32 v{vT0}, v{vT3}, 10, s47
    v_lshl_add_u32 v{vT0}, v{vT2}, 8, v{vT0}
    v_lshl_add_u32 v{vT0}, v{vT4}, 4, v{vT0}
    v_add_u32 v{vT1}, 512, v{vT0}
    v_mul_u32_u24 v{vT2}, 5120, v{vT2}
    v_and_b32 v{vT4}, 31, v{vL}
    v_lshl_add_u32 v{vT5}, v{vT4}, 4, v{vT2}
    s_lshl_b32 s46, s46, 9
    s_add_u32 s44, s44, s46
    s_branch p_fm
    p_fv:
    v_lshl_add_u32 v{vT0}, v{vT2}, 10, s47
    v_lshl_add_u32 v{vT0}, v{vT3}, 9, v{vT0}
    v_lshl_add_u32 v{vT0}, v{vT4}, 4, v{vT0}
    v_add_u32 v{vT1}, 256, v{vT0}
    v_mul_u32_u24 v{vT3}, 5120, v{vT3}
    v_mul_u32_u24 v{vT2}, 320, v{vT2}
    v_add_u32 v{vT2}, v{vT2}, v{vT3}
    v_lshl_add_u32 v{vT5}, v{vT4}, 4, v{vT2}
    s_mul_i32 s46, s46, 640
    s_add_u32 s44, s44, s46
    s_add_u32 s44, s44, 2048
    s_cmp_eq_u32 s{sJ}, 3
    s_cbranch_scc0 p_fm
    s_add_u32 s44, s44, 64
    s_mov_b32 exec_lo, 0xf000f000
    s_mov_b32 exec_hi, 0xf000f000
    p_fm:
    ds_read_b128 {r(RX,4)}, v{vT0}
    ds_read_b128 {r(RX+4,4)}, v{vT0} offset:4096
    ds_read_b128 {r(RX+8,4)}, v{vT1}
    ds_read_b128 {r(RX+12,4)}, v{vT1} offset:4096
    s_waitcnt lgkmcnt(0)''')
    for q in range(4):
        E(f'v_add_f32 v{RX+q}, v{RX+q}, v{RX+4+q}\nv_add_f32 v{RX+8+q}, v{RX+8+q}, v{RX+12+q}')
    E(f'''v_cvt_pk_bf16_f32 v{RX}, v{RX}, v{RX+1}
    v_cvt_pk_bf16_f32 v{RX+1}, v{RX+2}, v{RX+3}
    v_cvt_pk_bf16_f32 v{RX+2}, v{RX+8}, v{RX+9}
    v_cvt_pk_bf16_f32 v{RX+3}, v{RX+10}, v{RX+11}
    buffer_store_dwordx4 {r(RX,4)}, v{vT5}, {sr(SWS,4)}, s44 offen
    s_mov_b64 exec, -1
    s_branch p_q
    p_fkt:
    s_cmp_eq_u32 s45, 0
    s_cbranch_scc0 p_q
    v_lshrrev_b32 v{vT2}, 4, v{vL}
    v_lshlrev_b32 v{vT0}, 10, v{vT2}
    v_and_b32 v{vT4}, 15, v{vL}
    v_lshl_add_u32 v{vT0}, v{vT4}, 4, v{vT0}
    v_add_u32 v{vT0}, {XCH+768}, v{vT0}
    ds_read_b128 {r(RX,4)}, v{vT0}
    ds_read_b128 {r(RX+4,4)}, v{vT0} offset:4096
    v_lshrrev_b32 v{vT2}, 5, v{vL}
    v_mul_u32_u24 v{vT2}, 5120, v{vT2}
    v_and_b32 v{vT4}, 31, v{vL}
    v_lshl_add_u32 v{vT5}, v{vT4}, 4, v{vT2}
    s_and_b32 s46, s{sTB}, 1
    s_lshl_b32 s46, s46, 3
    s_add_u32 s44, s44, s46
    s_add_u32 s44, s44, 4608
    s_waitcnt lgkmcnt(0)''')
    for q in range(4): E(f'v_add_f32 v{RX+q}, v{RX+q}, v{RX+4+q}')
    E(f'''v_cvt_pk_bf16_f32 v{RX}, v{RX}, v{RX+1}
    v_cvt_pk_bf16_f32 v{RX+1}, v{RX+2}, v{RX+3}
    buffer_store_dwordx2 {r(RX,2)}, v{vT5}, {sr(SWS,4)}, s44 offen
    s_branch p_q
    p_frg:
    s_cmp_eq_u32 s45, 0
    s_cbranch_scc0 p_q
    v_lshrrev_b32 v{vT2}, 4, v{vL}
    v_lshlrev_b32 v{vT0}, 10, v{vT2}
    v_and_b32 v{vT4}, 15, v{vL}
    v_lshl_add_u32 v{vT0}, v{vT4}, 4, v{vT0}
    v_add_u32 v{vT0}, {XCH}, v{vT0}
    ds_read_b64 {r(RX,2)}, v{vT0}
    ds_read_b64 {r(RX+2,2)}, v{vT0} offset:4096
    s_lshl_b32 s46, s{sTB}, 6
    v_add_u32 v{vT1}, s46, v{vL}
    v_lshlrev_b32 v{vT5}, 2, v{vT1}
    v_sub_u32 v{vT1}, 2047, v{vT1}
    s_waitcnt lgkmcnt(0)
    v_add_f32 v{RX}, v{RX}, v{RX+2}
    v_add_f32 v{RX+1}, v{RX+1}, v{RX+3}
    v_mul_f32 v{RX+1}, {fbits(-LOG2E)}, v{RX+1}
    v_exp_f32 v{RX+1}, v{RX+1}
    v_ashrrev_i32 v{vT2}, 31, v{RX}
    v_add_f32 v{RX+1}, 1.0, v{RX+1}
    v_rcp_f32 v{RX+1}, v{RX+1}
    v_or_b32 v{vT2}, 0x80000000, v{vT2}
    v_xor_b32 v{vT2}, v{vT2}, v{RX}
    v_and_b32 v{vT2}, 0xfffff800, v{vT2}
    v_or_b32 v{vT2}, v{vT2}, v{vT1}
    s_mov_b32 s46, {WS_G}
    buffer_store_dword v{RX+1}, v{vT5}, {sr(SWS,4)}, s46 offen''')
    for sh in ('row_shr:1', 'row_shr:2', 'row_shr:4', 'row_shr:8', 'row_bcast:15 row_mask:0xa', 'row_bcast:31 row_mask:0xc'):
        E(f's_nop 1\nv_max_u32_dpp v{vT2}, v{vT2}, v{vT2} {sh}')
    E(f'''s_nop 1
    v_readlane_b32 s46, v{vT2}, 63
    s_lshl_b32 s47, s{sTB}, 2
    s_add_u32 s47, s47, {WS_KEY}
    v_mov_b32 v{vT2}, s46
    v_mov_b32 v{vT3}, s47
    buffer_store_dword v{vT2}, v{vT3}, {sr(SWS,4)}, 0 offen''')
    E('p_q:')
    gemm_stages([16, 12, 8, 4, 0])
    E(f'''s_mul_i32 s48, s2, {QWG}
    s_add_u32 s48, s48, {WS_Q}
    s_lshr_b32 s49, s{sNT}, 1
    s_mul_i32 s49, s49, 3072
    s_add_u32 s48, s48, s49
    s_and_b32 s49, s{sNT}, 1
    s_lshl_b32 s49, s49, 8
    s_add_u32 s48, s48, s49
    v_and_b32 v{vT2}, 15, v{vL}
    v_lshlrev_b32 v{vT2}, 4, v{vT2}
    v_and_b32 v{vT3}, 48, v{vL}
    s_mov_b32 s52, {fbits(QSCALE)}''')
    def finq(mt, i):
        c = 0
        for g in range(4):
            p = 4*mt + g; hd, sub = divmod(p, 5)
            o = (hd >> 1)*6144 + ((hd & 1)*1024 + (sub & 1)*512 + (sub >> 1)*8 if sub < 4 else 2048 + (hd & 1)*512)
            c |= o << (16*g)
        a = ACC + 4*mt
        E(f'''s_mov_b32 s50, {c & 0xffffffff:#x}
        s_mov_b32 s51, {c >> 32:#x}
        v_lshrrev_b64 {r(vT4,2)}, v{vT3}, s[50:51]
        v_and_b32 v{vT4}, 0xffff, v{vT4}
        v_add_u32 v{vT4}, v{vT4}, v{vT2}''')
        for q in range(4): E(f'v_mul_f32 v{a+q}, s52, v{a+q}')
        E(f'''v_cvt_pk_bf16_f32 v{a}, v{a}, v{a+1}
        v_cvt_pk_bf16_f32 v{a+1}, v{a+2}, v{a+3}
        buffer_store_dwordx2 {r(a,2)}, v{vT4}, {sr(SWS,4)}, s48 offen''')
    exchange('p', finq)
    E(f'{k}_end:\ns_endpgm')

P = [0, 32]; OA, OB = 64, 80; NEGM = 96
QA, QB, QT = 128, 132, 136
KM = [140, 144]; KX, KY = 148, 150
VV = [152, 160]
IDX, ADDR = 168, 169
FF = 172
aT0, aT1, aT2, aT3, aT4, aT5 = 200, 201, 202, 203, 204, 205
BLK, HALF = 10240, 5120
OFF_KT = 4608
sMASK = 40
sIT, sHOOK, sMODE, sSEL = 42, 43, 44, 45
def off_v(t, i): return 2048 + (2*t+i)*320
def smf(o, a, b): return f'v_smfmac_f32_32x32x32_bf16 {r(o,16)}, {r(a,4)}, {r(b,8)}, v{IDX}'

def period(t):
    cur, nxt = P[t & 1], P[(t+1) & 1]
    vp, vc = VV[(t+1) & 1], VV[t & 1]
    km = KM[(t+1) & 1]
    kt, abid = [(KX, 1), (KY, 0), (KY, 1), (KX, 0)][t]
    e = lambda a, b: [E(f'v_exp_f32 v{cur+i}, v{cur+i}') for i in range(a, b)]
    e(0, 2)
    E(smf(OB, vp+4, nxt+24))
    if t == 2:
        E(f's_bitcmp1_b32 s{sHOOK}, s{sIT}\ns_cbranch_scc1 a_hook\na_hookret:')
    tv, tk = t+1, t+2
    E(f'''s_waitcnt lgkmcnt(0)
    s_mov_b64 exec, {sr(sMASK,2)}
    ds_read_b128 {r(vp,4)}, v{ADDR} offset:{(tv>>2)*BLK+off_v(tv&3,0)}
    ds_read_b128 {r(vp+4,4)}, v{ADDR} offset:{(tv>>2)*BLK+off_v(tv&3,1)}
    s_mov_b64 exec, -1
    ds_read_b128 {r(KM[tk&1],4)}, v{ADDR} offset:{(tk>>2)*BLK+(tk&3)*512}''')
    if t == 0: E(f'ds_read_b64 {r(KY,2)}, v{ADDR} offset:{OFF_KT+8}')
    if t == 2: E(f'ds_read_b64 {r(KX,2)}, v{ADDR} offset:{BLK+OFF_KT}')
    e(2, 6)
    E(f'v_mfma_f32_32x32x4_2b_bf16 {r(nxt,32)}, {r(kt,2)}, {r(QT,2)}, {r(NEGM,32)} cbsz:1 abid:{abid}')
    e(6, 14)
    E(smf(OA, vc, cur))
    e(14, 18)
    E(smf(OA, vc+4, cur+8))
    e(18, 22)
    E(f'v_mfma_f32_32x32x16_bf16 {r(nxt,16)}, {r(km,4)}, {r(QA,4)}, {r(nxt,16)}')
    e(22, 26)
    E(smf(OB, vc, cur+16))
    e(26, 29)
    E(f'v_mfma_f32_32x32x16_bf16 {r(nxt+16,16)}, {r(km,4)}, {r(QB,4)}, {r(nxt+16,16)}')
    e(29, 32)

def kv_dma(SWS, tag):
    E(f'''s_mul_i32 s46, s{sKH}, 81920
    s_lshl_b32 s47, s{sNT}, 10
    s_add_u32 s46, s46, s47
    s_add_u32 s47, s46, 81920
    v_lshlrev_b32 v{aT0}, 4, v{vL}
    {tag}:
    s_mov_b32 m0, s46
    s_nop 0
    buffer_load_dwordx4 v{aT0}, {sr(SWS,4)}, s46 offen lds
    s_add_u32 s46, s46, 4096
    s_cmp_lt_u32 s46, s47
    s_cbranch_scc1 {tag}''')

def k_attn():
    k = 'attn_kernel'
    header(k)
    E(f'''s_load_dwordx2 s[20:21], s[0:1], {KA['ws']}
    s_load_dwordx2 s[8:9], s[0:1], {KA['x']}
    s_load_dwordx4 s[12:15], s[0:1], {KA['wg']}
    s_load_dwordx2 s[16:17], s[0:1], {KA['wd']}''')
    ids()
    SWS, SF = 36, 32
    E(f'''s_mul_i32 s48, s2, {QWG}
    s_mul_i32 s49, s{sNT}, 3072
    s_add_u32 s48, s48, s49
    s_add_u32 s48, s48, {WS_Q}
    s_lshl_b32 s49, s{sKH}, 10
    s_add_u32 s50, s48, s49
    s_xor_b32 s49, s49, 1024
    s_add_u32 s51, s48, s49
    v_lshlrev_b32 v{aT1}, 4, v{vL}
    s_lshl_b32 s49, s{sKH}, 9
    v_xor_b32 v{aT2}, s49, v{aT1}
    s_waitcnt lgkmcnt(0)''')
    srd(SWS, 20, WS_SIZE)
    E(f'''buffer_load_dwordx4 {r(QA,4)}, v{aT1}, {sr(SWS,4)}, s50 offen
    buffer_load_dwordx4 {r(QB,4)}, v{aT1}, {sr(SWS,4)}, s51 offen
    buffer_load_dwordx2 {r(QT,2)}, v{aT2}, {sr(SWS,4)}, s48 offen offset:2048''')
    kv_dma(SWS, 'a_kv')
    E(f'''s_add_u32 s22, s20, {WS_KEY}
    s_addc_u32 s23, s21, 0
    s_load_dwordx16 s[64:79], s[22:23], 0
    s_load_dwordx16 s[80:95], s[22:23], 64''')
    E(f'''v_mov_b32 v{IDX}, 0xdddd
    v_and_b32 v{aT1}, 31, v{vL}
    v_lshrrev_b32 v{aT2}, 5, v{vL}
    v_mul_u32_u24 v{aT2}, {HALF}, v{aT2}
    v_lshl_add_u32 v{aT3}, v{aT1}, 4, v{aT2}
    v_cmp_eq_u32 vcc, 20, v{aT1}
    v_mov_b32 v{aT1}, 0x3f803f80
    s_mov_b32 s{sMASK}, 0xfffff
    s_mov_b32 s{sMASK+1}, 0xfffff''')
    for i in range(16): E(f'v_cndmask_b32 v{VV[0]+i}, 0, v{aT1}, vcc')
    E(f's_mov_b32 s{sMODE}, 0')
    E(f'''s_bitcmp1_b32 s2, 7
    s_cselect_b32 s12, s14, s12
    s_cselect_b32 s13, s15, s13
    s_cmp_eq_u32 s{sKH}, 0
    s_cselect_b32 s12, s16, s12
    s_cselect_b32 s13, s17, s13
    s_cselect_b32 s{sHOOK}, 0x3b, 0x8f''')
    srd(SF, 12, 640*1728*2)
    E('s_waitcnt lgkmcnt(0)')
    for i in range(16): E(f's_max_u32 s{64+i}, s{64+i}, s{80+i}')
    for n in (8, 4, 2, 1):
        for i in range(n): E(f's_max_u32 s{64+i}, s{64+i}, s{64+n+i}')
    E(f'''s_and_b32 s{sSEL}, s64, 0x7ff
    s_sub_u32 s{sSEL}, 2047, s{sSEL}
    s_lshl_b32 s46, s2, 2
    s_add_u32 s46, s46, s{sNT}
    s_and_b32 s52, s46, 31
    s_bfe_u32 s53, s46, 0x40005
    s_mul_i32 s46, s{sSEL}, 1280
    s_mul_i32 s47, s52, 40
    s_add_u32 s46, s46, s47
    s_add_u32 s22, s8, s46
    s_addc_u32 s23, s9, 0
    s_load_dwordx8 s[64:71], s[22:23], 0
    s_load_dwordx2 s[72:73], s[22:23], 32''')
    E('s_waitcnt vmcnt(17) lgkmcnt(0)\ns_barrier')
    E(f'''ds_read_b128 {r(KM[0],4)}, v{aT3}
    ds_read_b64 {r(KX,2)}, v{aT3} offset:{OFF_KT}
    s_mul_i32 s46, s{sKH}, 81920
    v_add_u32 v{ADDR}, s46, v{aT3}
    s_waitcnt lgkmcnt(0)
    v_mfma_f32_32x32x16_bf16 {r(P[0],16)}, {r(KM[0],4)}, {r(QA,4)}, 0
    v_mfma_f32_32x32x16_bf16 {r(P[0]+16,16)}, {r(KM[0],4)}, {r(QB,4)}, 0
    s_nop 9
    v_mfma_f32_32x32x4_2b_bf16 {r(P[0],32)}, {r(KX,2)}, {r(QT,2)}, {r(P[0],32)} cbsz:1 abid:0
    v_mov_b32 v{aT4}, 0x3f80
    v_mov_b32 v{aT5}, 0
    s_nop 15
    s_nop 1''')
    for b in (0, 16):
        E(f'v_max3_f32 v{b}, v{b}, v{b+1}, v{b+2}')
        for i in range(3, 15, 2): E(f'v_max3_f32 v{b}, v{b}, v{b+i}, v{b+i+1}')
        E(f'v_max_f32 v{b}, v{b}, v{b+15}')
    E(f'''s_nop 1
    v_permlane32_swap_b32 v0, v16
    v_max_f32 v0, v0, v16
    v_sub_f32 v0, {fbits(-XSHIFT)}, v0
    v_lshrrev_b32 v0, 16, v0
    v_mov_b32 v1, 0
    s_nop 1
    v_mfma_f32_32x32x4_2b_bf16 {r(NEGM,32)}, {r(aT4,2)}, {r(0,2)}, 0''')
    E('a_go:')
    E(f'''s_mov_b64 exec, {sr(sMASK,2)}
    ds_read_b128 {r(VV[0],4)}, v{ADDR} offset:{off_v(0,0)}
    ds_read_b128 {r(VV[0]+4,4)}, v{ADDR} offset:{off_v(0,1)}
    s_mov_b64 exec, -1
    ds_read_b128 {r(KM[0],4)}, v{ADDR}
    ds_read_b64 {r(KX,2)}, v{ADDR} offset:{OFF_KT}
    ds_read_b128 {r(KM[1],4)}, v{ADDR} offset:512''')
    for i in range(32): E(f'v_mov_b32 v{OA+i}, 0')
    for i in range(8): E(f'v_mov_b32 v{P[1]+24+i}, 0')
    E(f'''s_waitcnt lgkmcnt(0)
    v_mfma_f32_32x32x4_2b_bf16 {r(P[0],32)}, {r(KX,2)}, {r(QT,2)}, {r(NEGM,32)} cbsz:1 abid:0
    s_nop 15
    s_nop 1
    v_mfma_f32_32x32x16_bf16 {r(P[0],16)}, {r(KM[0],4)}, {r(QA,4)}, {r(P[0],16)}
    v_mfma_f32_32x32x16_bf16 {r(P[0]+16,16)}, {r(KM[0],4)}, {r(QB,4)}, {r(P[0]+16,16)}
    s_mov_b32 s{sIT}, 0
    s_nop 9''')
    E('.p2align 6\na_loop:')
    for t in range(4): period(t)
    E(f'''v_add_u32 v{ADDR}, {BLK}, v{ADDR}
    s_add_u32 s{sIT}, s{sIT}, 1
    s_cmp_lt_u32 s{sIT}, 8
    s_cbranch_scc1 a_loop''')
    E(smf(OB, VV[1]+4, P[1]+24))
    E(f'''s_setprio 0
    s_mul_i32 s46, s{sW}, 3072
    v_lshl_add_u32 v{aT0}, v{vL}, 4, s46
    s_xor_b32 s47, s{sW}, 4
    s_mul_i32 s47, s47, 3072
    v_lshl_add_u32 v{aT1}, v{vL}, 4, s47
    s_waitcnt lgkmcnt(0)
    s_barrier
    s_nop 7''')
    for i in range(3): E(f'ds_write_b128 v{aT0}, {r(OB+4*i,4)} offset:{1024*i}')
    E(f'''v_mov_b32 v{aT2}, 0
    v_mov_b32 v{aT3}, 24576
    ds_write_b32 v{aT3}, v{aT2}
    s_waitcnt lgkmcnt(0)
    s_barrier''')
    for i in range(3): E(f'ds_read_b128 {r(4*i,4)}, v{aT1} offset:{1024*i}')
    E(f'''s_lshl_b32 s46, s{sTB}, 6
    s_and_b32 s47, s{sNT}, 1
    s_lshl_b32 s47, s47, 5
    s_add_u32 s46, s46, s47
    v_and_b32 v{aT4}, 31, v{vL}
    v_add_u32 v{aT4}, s46, v{aT4}
    v_mul_u32_u24 v{aT4}, 1280, v{aT4}
    v_lshrrev_b32 v{aT5}, 5, v{vL}
    v_lshl_add_u32 v{aT5}, v{aT5}, 4, v{aT4}
    s_lshl_b32 s46, s{sJ}, 2
    s_and_b32 s47, s{sNT}, 2
    s_add_u32 s46, s46, s47
    s_add_u32 s46, s46, s{sKH}
    s_mul_i32 s46, s46, 40
    s_add_u32 s46, s46, {WS_O}
    s_waitcnt lgkmcnt(0)''')
    for i in range(12): E(f'v_add_f32 v{OA+i}, v{OA+i}, v{i}')
    E(f'''v_mov_b32 v0, v{OA+8}
    v_mov_b32 v1, v{OA+8}
    s_nop 1
    v_permlane32_swap_b32 v0, v1
    v_rcp_f32 v2, v1
    s_mov_b32 s48, {fbits(2.0**-100)}
    s_mov_b32 s49, {fbits(2.0**120)}
    v_cmp_nge_f32 vcc, v1, s48
    v_cmp_nle_f32 s[50:51], v1, s49''')
    for i in range(12): E(f'v_mul_f32 v{OA+i}, v{OA+i}, v2')
    E(f's_or_b64 s[50:51], s[50:51], vcc')
    E(f'v_maximum3_f32 v3, |v{OA}|, |v{OA+1}|, |v{OA+2}|')
    for i in range(3, 11, 2): E(f'v_maximum3_f32 v3, v3, |v{OA+i}|, |v{OA+i+1}|')
    E(f'''v_maximum3_f32 v3, v3, |v{OA+11}|, |v{OA+11}|
    s_mov_b32 s48, 0x7f800000
    v_cmp_nlt_f32 vcc, v3, s48''')
    for i in range(6): E(f'v_cvt_pk_bf16_f32 v{4+i}, v{OA+2*i}, v{OA+2*i+1}')
    E(f'''s_or_b64 s[50:51], s[50:51], vcc
    s_cbranch_scc0 a_ok
    v_mov_b32 v{aT2}, 1
    ds_write_b32 v{aT3}, v{aT2}
    a_ok:
    v_permlane32_swap_b32 v4, v6
    v_permlane32_swap_b32 v5, v7
    buffer_store_dwordx4 {r(4,4)}, v{aT5}, {sr(SWS,4)}, s46 offen
    s_mov_b32 exec_hi, 0
    buffer_store_dwordx2 {r(8,2)}, v{aT4}, {sr(SWS,4)}, s46 offen offset:32
    s_mov_b32 exec_hi, -1
    s_waitcnt lgkmcnt(0)
    s_barrier
    ds_read_b32 v{aT2}, v{aT3}
    s_waitcnt lgkmcnt(0)
    v_readfirstlane_b32 s47, v{aT2}
    s_nop 1
    s_cmp_gt_u32 s47, s{sMODE}
    s_cbranch_scc1 a_exact
    {k}_end:
    s_endpgm''')
    E(f'''a_exact:
    s_mov_b32 s{sMODE}, 1
    s_mov_b32 s{sHOOK}, 0
    s_waitcnt vmcnt(0)
    s_barrier''')
    kv_dma(SWS, 'a_kv2')
    E(f'''v_and_b32 v{aT1}, 31, v{vL}
    v_lshrrev_b32 v{aT2}, 5, v{vL}
    v_mul_u32_u24 v{aT2}, {HALF}, v{aT2}
    v_lshl_add_u32 v{aT3}, v{aT1}, 4, v{aT2}
    s_mul_i32 s46, s{sKH}, 81920
    v_add_u32 v{ADDR}, s46, v{aT3}
    v_mov_b32 v{aT4}, 0xff800000
    v_mov_b32 v{aT5}, 0xff800000
    s_mov_b32 s46, 0
    s_waitcnt vmcnt(0)
    s_barrier
    a_mx:''')
    for t in range(4):
        E(f'''ds_read_b128 {r(KM[0],4)}, v{aT3} offset:{t*512}
        ds_read_b64 {r(KX,2)}, v{aT3} offset:{OFF_KT+8*(t>>1)}
        s_waitcnt lgkmcnt(0)
        v_mfma_f32_32x32x4_2b_bf16 {r(P[0],32)}, {r(KX,2)}, {r(QT,2)}, 0 cbsz:1 abid:{t&1}
        s_nop 15
        s_nop 1
        v_mfma_f32_32x32x16_bf16 {r(P[0],16)}, {r(KM[0],4)}, {r(QA,4)}, {r(P[0],16)}
        v_mfma_f32_32x32x16_bf16 {r(P[0]+16,16)}, {r(KM[0],4)}, {r(QB,4)}, {r(P[0]+16,16)}
        s_nop 11''')
        for i in range(0, 16, 2):
            E(f'v_max3_f32 v{aT4}, v{aT4}, v{i}, v{i+1}\nv_max3_f32 v{aT5}, v{aT5}, v{16+i}, v{17+i}')
    E(f'''v_add_u32 v{aT3}, {BLK}, v{aT3}
    s_add_u32 s46, s46, 1
    s_cmp_lt_u32 s46, 16
    s_cbranch_scc1 a_mx
    v_mov_b32 v0, v{aT4}
    v_mov_b32 v1, v{aT5}
    s_nop 1
    v_permlane32_swap_b32 v0, v{aT4}
    v_permlane32_swap_b32 v1, v{aT5}
    v_max_f32 v0, v0, v{aT4}
    v_max_f32 v1, v1, v{aT5}''')
    for i in range(16): E(f'v_sub_f32 v{NEGM+i}, 0, v0\nv_sub_f32 v{NEGM+16+i}, 0, v1')
    E('s_branch a_go')
    E(f'''a_hook:
    s_cmp_eq_u32 s{sKH}, 0
    s_cbranch_scc1 a_hA''')
    E(f'''s_cmp_eq_u32 s{sIT}, 0
    s_cbranch_scc0 a_hB1
    s_waitcnt vmcnt(15)
    s_barrier
    s_mul_i32 s46, s52, {20*3456}
    s_mul_i32 s47, s53, 216
    s_add_u32 s46, s46, s47
    v_lshlrev_b32 v{aT0}, 2, v{vL}''')
    for i in range(10):
        E(f'''buffer_load_dword v{FF+2*i}, v{aT0}, {sr(SF,4)}, s46 offen
        buffer_load_dword v{FF+2*i+1}, v{aT0}, {sr(SF,4)}, s46 offen offset:3456
        s_add_u32 s46, s46, 6912''')
    E(f'''s_branch a_hookret
    a_hB1:
    s_cmp_eq_u32 s{sIT}, 1
    s_cbranch_scc0 a_hB2
    s_waitcnt vmcnt(20)
    s_barrier
    s_setprio 2
    s_branch a_hookret
    a_hB2:
    s_cmp_eq_u32 s{sIT}, 2
    s_cbranch_scc0 a_hB3
    s_mov_b32 s46, 0x05040100
    s_mov_b32 s47, 0x07060302
    v_mov_b32 v{aT1}, 0
    v_mov_b32 v{aT2}, 0
    s_waitcnt vmcnt(0)''')
    for i in range(10):
        E(f'''v_perm_b32 v{aT4}, v{FF+2*i+1}, v{FF+2*i}, s46
        v_perm_b32 v{aT5}, v{FF+2*i+1}, v{FF+2*i}, s47
        v_dot2c_f32_bf16 v{aT1}, s{64+i}, v{aT4}
        v_dot2c_f32_bf16 v{aT2}, s{64+i}, v{aT5}''')
    E(f'''s_lshr_b32 s46, s2, 7
    s_mul_i32 s46, s46, 6912
    s_mul_i32 s47, s53, 216
    s_add_u32 s46, s46, s47
    s_add_u32 s46, s46, {WS_Z+Z_H}
    s_mov_b32 exec_hi, 0x3fffff
    buffer_atomic_add_f32 v{aT1}, v{aT0}, {sr(SWS,4)}, s46 offen
    buffer_atomic_add_f32 v{aT2}, v{aT0}, {sr(SWS,4)}, s46 offen offset:3456
    s_mov_b32 exec_hi, -1
    s_branch a_hookret
    a_hB3:
    s_cmp_eq_u32 s{sIT}, 3
    s_cbranch_scc0 a_hB7
    s_lshl_b32 s46, s53, 7
    s_add_u32 s46, s46, {WS_Z+Z_C1}
    v_mov_b32 v{aT1}, 1
    v_mov_b32 v{aT2}, 0
    s_waitcnt vmcnt(0)
    s_mov_b64 exec, 1
    buffer_atomic_add v{aT1}, v{aT2}, {sr(SWS,4)}, s46 offen
    s_mov_b64 exec, -1
    s_branch a_hookret
    a_hB7:
    s_setprio 0
    s_branch a_hookret''')
    E(f'''a_hA:
    s_cmp_eq_u32 s{sIT}, 0
    s_cbranch_scc0 a_hA1
    s_waitcnt vmcnt(15)
    s_barrier
    s_mul_i32 s46, s2, {8*1280}
    s_mul_i32 s47, s{sNT}, 320
    s_add_u32 s46, s46, s47
    s_add_u32 s47, s46, 5120
    v_lshlrev_b32 v{aT0}, 3, v{vL}''')
    for i in range(8):
        E(f'buffer_load_dwordx2 {r(FF+2*i,2)}, v{aT0}, {sr(SF,4)}, s{46+(i>>2)} offen offset:{(i&3)*1280}')
    E(f'''s_branch a_hookret
    a_hA1:
    s_cmp_eq_u32 s{sIT}, 1
    s_cbranch_scc0 a_hA3
    s_waitcnt vmcnt(8)
    s_barrier
    s_setprio 1
    s_cmp_lt_u32 s2, 216
    s_cbranch_scc1 a_hookret
    s_mov_b32 s{sHOOK}, 0
    s_branch a_hookret
    a_hA3:
    s_mov_b32 s46, {WS_Z+Z_C1}
    s_cmp_eq_u32 s{sIT}, 3
    s_cbranch_scc0 a_hA4
    v_and_b32 v{aT1}, 15, v{vL}
    v_lshlrev_b32 v{aT1}, 7, v{aT1}
    buffer_load_dword v{aT2}, v{aT1}, {sr(SWS,4)}, s46 offen sc1
    s_branch a_hookret
    a_hA4:
    s_cmp_eq_u32 s{sIT}, 4
    s_cbranch_scc0 a_hA5
    s_mov_b32 s47, 0
    a_spin1:
    s_waitcnt vmcnt(0)
    v_cmp_ne_u32 vcc, 64, v{aT2}
    s_add_u32 s47, s47, 1
    s_cmp_eq_u64 vcc, 0
    s_cbranch_scc1 a_c1ok
    s_cmp_gt_u32 s47, {SPINMAX}
    s_cbranch_scc1 a_c1ok
    s_sleep 4
    buffer_load_dword v{aT2}, v{aT1}, {sr(SWS,4)}, s46 offen sc1
    s_branch a_spin1
    a_c1ok:
    s_lshl_b32 s46, s2, 4
    s_add_u32 s46, s46, {WS_Z+Z_H}
    s_add_u32 s47, s46, 6912
    v_and_b32 v{aT1}, 3, v{vL}
    v_lshlrev_b32 v{aT1}, 2, v{aT1}
    buffer_load_dword v{FF+16}, v{aT1}, {sr(SWS,4)}, s46 offen sc1
    buffer_load_dword v{FF+17}, v{aT1}, {sr(SWS,4)}, s46 offen offset:3456 sc1
    buffer_load_dword v{FF+18}, v{aT1}, {sr(SWS,4)}, s47 offen sc1
    buffer_load_dword v{FF+19}, v{aT1}, {sr(SWS,4)}, s47 offen offset:3456 sc1
    s_branch a_hookret
    a_hA5:
    s_waitcnt vmcnt(0)
    v_mul_f32 v{aT1}, {fbits(-LOG2E)}, v{FF+16}
    v_mul_f32 v{aT2}, {fbits(-LOG2E)}, v{FF+17}
    v_exp_f32 v{aT1}, v{aT1}
    v_exp_f32 v{aT2}, v{aT2}
    v_mul_f32 v{FF+16}, v{FF+16}, v{FF+18}
    v_add_f32 v{aT1}, 1.0, v{aT1}
    v_add_f32 v{aT2}, 1.0, v{aT2}
    v_rcp_f32 v{aT1}, v{aT1}
    v_rcp_f32 v{aT2}, v{aT2}
    v_mul_f32 v{FF+17}, v{FF+17}, v{FF+19}
    v_mul_f32 v{aT1}, v{aT1}, v{FF+16}
    v_mul_f32 v{aT2}, v{aT2}, v{FF+17}
    v_cvt_pk_bf16_f32 v{aT1}, v{aT1}, v{aT2}
    s_mov_b32 s46, 0x05040100
    s_mov_b32 s47, 0x07060302''')
    for q in range(4): E(f'v_readlane_b32 s{64+q}, v{aT1}, {q}')
    for c in range(4): E(f'v_mov_b32 v{FF+16+c}, 0')
    for q in range(4):
        a, b = FF+4*q, FF+4*q+2
        E(f'''v_perm_b32 v{aT1}, v{b}, v{a}, s46
        v_perm_b32 v{aT2}, v{b}, v{a}, s47
        v_perm_b32 v{aT4}, v{b+1}, v{a+1}, s46
        v_perm_b32 v{aT5}, v{b+1}, v{a+1}, s47
        v_dot2c_f32_bf16 v{FF+16}, s{64+q}, v{aT1}
        v_dot2c_f32_bf16 v{FF+17}, s{64+q}, v{aT2}
        v_dot2c_f32_bf16 v{FF+18}, s{64+q}, v{aT4}
        v_dot2c_f32_bf16 v{FF+19}, s{64+q}, v{aT5}''')
    E(f'''s_and_b32 s46, s2, 7
    s_mul_i32 s46, s46, 2560
    s_mul_i32 s47, s{sNT}, 640
    s_add_u32 s46, s46, s47
    s_add_u32 s46, s46, {WS_Z+Z_Y}
    v_lshlrev_b32 v{aT1}, 4, v{vL}
    s_mov_b32 exec_hi, 0xff''')
    for c in range(4): E(f'buffer_atomic_add_f32 v{FF+16+c}, v{aT1}, {sr(SWS,4)}, s46 offen offset:{4*c}')
    E('s_mov_b32 exec_hi, -1\ns_branch a_hookret')

def k_outp():
    k = 'outp_kernel'
    header(k)
    E(f'''s_load_dwordx2 s[8:9], s[0:1], {KA['x']}
    s_load_dwordx2 s[10:11], s[0:1], {KA['wo']}
    s_load_dwordx2 s[12:13], s[0:1], {KA['out']}
    s_load_dwordx2 s[20:21], s[0:1], {KA['ws']}''')
    ids(); act_offsets(); tr_base()
    SX, SWO, SO, SWS, SOUT = 24, 28, 32, 36, 56
    XR = 128
    XF = 136; vG = 148; vEo = 149; YT = 152
    E('s_waitcnt lgkmcnt(0)')
    E(f's_add_u32 s22, s20, {WS_O}\ns_addc_u32 s23, s21, 0')
    srd(SO, 22, XBYTES)
    act_loads(SO)
    srd(SWO, 10, WBYTES); srd(SWS, 20, WS_SIZE); srd(SX, 8, XBYTES); srd(SOUT, 12, XBYTES)
    E(f'''s_add_u32 s22, s20, {WS_KEY}
    s_addc_u32 s23, s21, 0
    s_load_dwordx16 s[64:79], s[22:23], 0
    s_load_dwordx16 s[80:95], s[22:23], 64''')
    E(f'''s_lshl_b32 s45, s{sTB}, 6
    s_lshl_b32 s41, s{sNT}, 4
    s_add_u32 s45, s45, s41
    v_and_b32 v{vT0}, 15, v{vL}
    v_add_u32 v{vT0}, s45, v{vT0}
    v_mul_u32_u24 v{vEo}, 1280, v{vT0}
    v_lshrrev_b32 v{vT1}, 4, v{vL}
    v_lshl_add_u32 v{vEo}, v{vT1}, 3, v{vEo}
    s_mul_i32 s46, s{sJ}, 160
    s_mul_i32 s41, s{sKH}, 96
    s_add_u32 s46, s46, s41
    v_lshlrev_b32 v{vT0}, 2, v{vT0}
    s_mov_b32 s41, {WS_G}
    buffer_load_dword v{vG}, v{vT0}, {sr(SWS,4)}, s41 offen''')
    for i in range(3): E(f'buffer_load_dwordx2 {r(XR+2*i,2)}, v{vEo}, {sr(SX,4)}, s46 offen offset:{32*i}')
    E(f's_cmp_lt_u32 s{sW}, 5\ns_cbranch_scc0 o_now')
    w_pattern(); w_dma(SWO, 'o')
    E('s_waitcnt vmcnt(20)\ns_branch o_e0\no_now:\ns_waitcnt vmcnt(0)\no_e0:')
    for i in range(3):
        for h in range(2):
            E(f'v_lshlrev_b32 v{XF+4*i+2*h}, 16, v{XR+2*i+h}\nv_and_b32 v{XF+4*i+2*h+1}, 0xffff0000, v{XR+2*i+h}')
    E('s_waitcnt lgkmcnt(0)')
    for i in range(16): E(f's_max_u32 s{64+i}, s{64+i}, s{80+i}')
    for n in (8, 4, 2, 1):
        for i in range(n): E(f's_max_u32 s{64+i}, s{64+i}, s{64+n+i}')
    E(f'''s_and_b32 s47, s64, 0x7ff
    s_sub_u32 s47, 2047, s47
    s_sub_u32 s47, s47, s45
    s_cmp_lt_u32 s47, 16
    s_cbranch_scc0 o_noy
    s_and_b32 s48, s64, 0xfffff800
    s_ashr_i32 s49, s48, 31
    s_not_b32 s49, s49
    s_or_b32 s49, s49, 0x80000000
    s_xor_b32 s48, s48, s49
    v_mov_b32 v{vT2}, s48
    v_mul_f32 v{vT2}, {fbits(-LOG2E)}, v{vT2}
    v_exp_f32 v{vT2}, v{vT2}
    v_and_b32 v{vT0}, 15, v{vL}
    v_add_f32 v{vT2}, 1.0, v{vT2}
    v_rcp_f32 v{vT2}, v{vT2}
    v_cmp_eq_u32 vcc, s47, v{vT0}
    v_and_b32 v{vT1}, 48, v{vL}
    s_lshl_b32 s48, s46, 1
    s_add_u32 s48, s48, {WS_Z+Z_Y}
    v_cndmask_b32 v{vT2}, 0, v{vT2}, vcc
    s_mov_b32 s49, 0
    o_yl:''')
    for i in range(3): E(f'buffer_load_dwordx4 {r(YT+4*i,4)}, v{vT1}, {sr(SWS,4)}, s48 offen offset:{64*i}')
    E('s_waitcnt vmcnt(0)')
    for i in range(12): E(f'v_fmac_f32 v{XF+i}, v{YT+i}, v{vT2}')
    E(f'''s_add_u32 s48, s48, 2560
    s_add_u32 s49, s49, 1
    s_cmp_lt_u32 s49, 8
    s_cbranch_scc1 o_yl
    o_noy:''')
    gemm_stages([16, 12, 8, 4, 0])
    def fino(mt, i):
        a = ACC + 4*mt
        for q in range(4):
            E(f'v_sub_f32 v{a+q}, v{a+q}, v{XF+4*i+q}\nv_fma_f32 v{a+q}, v{a+q}, v{vG}, v{XF+4*i+q}')
        E(f'''v_cvt_pk_bf16_f32 v{a}, v{a}, v{a+1}
        v_cvt_pk_bf16_f32 v{a+1}, v{a+2}, v{a+3}
        buffer_store_dwordx2 {r(a,2)}, v{vEo}, {sr(SOUT,4)}, s46 offen offset:{32*i}''')
    exchange('o', fino)
    E(f'{k}_end:\ns_endpgm')

def desc(k):
    return f'''.p2align 6
.amdhsa_kernel {k}
  .amdhsa_next_free_vgpr 256
  .amdhsa_next_free_sgpr 102
  .amdhsa_accum_offset 256
  .amdhsa_group_segment_fixed_size 0
  .amdhsa_kernarg_size 112
  .amdhsa_user_sgpr_count 2
  .amdhsa_user_sgpr_kernarg_segment_ptr 1
  .amdhsa_system_sgpr_workgroup_id_x 1
  .amdhsa_float_denorm_mode_32 3
.end_amdhsa_kernel'''

def main(path):
    ref = open(f'cdna_kernels/{NAME}.s.ref').read().splitlines()
    head = [l for l in ref if l.startswith(';') and '@launch' not in l and 'Override' not in l and 'grid=ceil' not in l]
    head += [f'; @launch kernel=proj_kernel grid=(256,1,1) block=(512,1,1) lds={LDS_P}',
             f'; @launch kernel=attn_kernel grid=(256,1,1) block=(512,1,1) lds=163840',
             f'; @launch kernel=outp_kernel grid=(256,1,1) block=(512,1,1) lds={LDS_P}']
    k_proj(); k_attn(); k_outp()
    txt = '\n'.join(head) + '\n.amdgcn_target "amdgcn-amd-amdhsa--gfx950"\n.text\n' + '\n'.join(L) + '\n.section .rodata,"a"\n'
    txt += '\n'.join(desc(k) for k in ('proj_kernel', 'attn_kernel', 'outp_kernel')) + '\n'
    open(path, 'w').write(txt)
if __name__ == '__main__':
    main(sys.argv[1] if len(sys.argv) > 1 else f'cdna_kernels/{NAME}.s')
```

```python
import sys, math, struct, os
NAME = 'gated_mix__grouped_kv_mqa__moe_arch_mod__prompt'
K = NAME + '_kernel'
L = []
def E(s=''):
    for x in s.split('\n'):
        x = x.strip()
        if x: L.append(x if x.endswith(':') or x.startswith('.') else '    ' + x)
def r(a, n): return f'v[{a}:{a+n-1}]'
def sr(a, n): return f's[{a}:{a+n-1}]'
def fbits(x): return '0x%08x' % struct.unpack('<I', struct.pack('<f', x))[0]
STAMPS = int(os.environ.get('STAMPS', '0'))
OPT = os.environ.get('OPT', '')

WS_KV = 0; WS_FLAG = 0x30000; WS_G = 0x34000; WS_Z = 0x40000
Z_H = 0; Z_Y = 16384; Z_C1 = 57344; Z_C2 = 65536; Z_SIZE = 81920
WS_O = 0x80000
WS_SIZE = 0x800000
XBYTES = 2048*640*2; WBYTES = 640*640*2; FBYTES = 640*1728*2
QSCALE = math.log2(math.e)/math.sqrt(20.0)
LOG2E = math.log2(math.e)
XSHIFT = float(os.environ.get('XS', '88'))
SPINMAX = 100000
pX, pWQ, pWK, pWV, pWO, pWR, pWG, pWU, pWD, pGW, pOUT, pDBG, pWS = 64, 66, 68, 70, 72, 76, 78, 80, 82, 84, 86, 88, 90
sKH, sW, sTB, sJ, sNT = 3, 4, 5, 6, 7
SX, SW, SE, SWS, SF, SD = 8, 12, 16, 20, 24, 28
sROT, sNP, sKEY, sIT, sHOOK, sMODE = 32, 33, 34, 35, 36, 37
sMASK = 38
sXP = 52
t0, t1, t2, t3, t4, t5, t6, t7 = 40, 41, 42, 43, 44, 45, 46, 47
sKR, sCB = 48, 49
vL = 255
P = [0, 32]; OA, OB = 64, 80; NEGM = 96
QA, QB, QT = 128, 132, 136
KM = [140, 144]; KX, KY = 148, 150
VV = [152, 160]
IDX, ADDR, vNM = 168, 169, 170
FF = 172
XB = 0; ACC = 40; AF = [96, 172]; RX = 116
a0, a1, a2, a3, a4, a5, a6, a7 = 200, 201, 202, 203, 204, 205, 206, 207
vWo, vTr, vXa, vXb, vL16, vW40 = 208, 209, 210, 211, 212, 213
PL = 216
BLK, HALF, SETB = 10240, 5120, 81920
OFF_KT = 4608
L_X = 0; L_WKV = 81920; L_PART = 107520; L_CNT = L_PART + 2048 + 512
L_W1 = 122880; L_W2 = 20480; L_QX = 102400; L_QF = 151552 - 64; L_KEY = 163840 - 64
OUTBOX = 0
T_W = 40960; T_OX = 0; T_OS = 28672; T_BAD = 38912; T_GX = 143360

NST = 32
def stamp(i, real=False):
    if not STAMPS: return
    E(f'''{'s_memrealtime' if real else 's_memtime'} s[96:97]
    s_waitcnt lgkmcnt(0)
    v_writelane_b32 v254, s96, {i}''')
def stamp_out():
    if not STAMPS: return
    E(f'''s_lshl_b32 s96, s2, 3
    s_add_u32 s96, s96, s{sW}
    s_mul_i32 s96, s96, 256
    s_add_u32 s96, s96, 0x700000
    v_lshlrev_b32 v253, 2, v{vL}
    buffer_store_dword v254, v253, {sr(SWS,4)}, s96 offen''')

def srd(d, p, nbytes):
    E(f's_mov_b32 s{d}, s{p}\ns_and_b32 s{d+1}, s{p+1}, 0xffff\ns_mov_b32 s{d+2}, {nbytes}\ns_mov_b32 s{d+3}, 0x20000')
def mod5(d, a, b):
    E(f's_add_u32 s{d}, {a}, {b}\ns_cmp_ge_u32 s{d}, 5\ns_cselect_b32 s{t7}, 5, 0\ns_sub_u32 s{d}, s{d}, s{t7}')
def dma(v, S, soff, off=0, mods=''):
    E(f'buffer_load_dwordx4 v{v}, {sr(S,4)}, {soff} offen {"offset:%d " % off if off else ""}{mods} lds')
def smf(o, a, b): return f'v_smfmac_f32_32x32x32_bf16 {r(o,16)}, {r(a,4)}, {r(b,8)}, v{IDX}'
def off_v(t, i): return 2048 + (2*t+i)*320
def wave_max_u32(v):
    for sh in ('row_shr:1', 'row_shr:2', 'row_shr:4', 'row_shr:8', 'row_bcast:15 row_mask:0xa', 'row_bcast:31 row_mask:0xc'):
        E(f's_nop 1\nv_max_u32_dpp v{v}, v{v}, v{v} {sh}')

def w_issue(pos, ldsbase):
    mod5(t0, f's{sROT}', pos)
    E(f's_mul_i32 s{t0}, s{t0}, 163840\ns_lshl_b32 s{t1}, s{sW}, 10')
    for i in range(4):
        E(f's_add_u32 m0, s{t1}, {ldsbase + i*5120}')
        if i: E(f's_add_u32 s{t0}, s{t0}, 40960')
        else: E('s_nop 0')
        dma(vWo, SW, f's{t0}')

def gemm_stage(first, base, xb):
    def rd(st, mt):
        a = AF[st] + 4*mt
        E(f'ds_read_b64_tr_b16 {r(a,2)}, v{vTr} offset:{base + st*5120 + mt*32}')
        E(f'ds_read_b64_tr_b16 {r(a+2,2)}, v{vTr} offset:{base + st*5120 + 2560 + mt*32}')
    def mm(st, mt):
        c = '0' if (first and st == 0) else r(ACC+4*mt, 4)
        E(f'v_mfma_f32_16x16x32_bf16 {r(ACC+4*mt,4)}, {r(AF[st]+4*mt,4)}, {r(xb+4*st,4)}, {c}')
    return rd, mm
def gemm_run(rd, mm, mid=None):
    for mt in range(5): rd(0, mt)
    if mid: mid()
    for mt in range(5):
        rd(1, mt); E('s_waitcnt lgkmcnt(10)'); mm(0, mt)
    for mt in range(5):
        E(f's_waitcnt lgkmcnt({2*(4-mt)})'); mm(1, mt)

def exchange(tag, base, finish, pre=None):
    E(f'''s_mul_i32 s{t0}, s{sNT}, 5120
    s_add_u32 s{t0}, s{t0}, {base}
    v_add_u32 v{a0}, s{t0}, v{vL16}''')
    if pre: pre()
    E(f's_nop 3\ns_cmp_eq_u32 s{sKH}, 0\ns_cbranch_scc0 {tag}_x1')
    for kh, (send, keep) in enumerate((((3,4),(0,1,2)), ((0,1,2),(3,4)))):
        if kh: E(f'{tag}_x1:')
        for mt in send: E(f'ds_write_b128 v{a0}, {r(ACC+4*mt,4)} offset:{1024*mt}')
        E('s_waitcnt lgkmcnt(0)\ns_barrier')
        for i, mt in enumerate(keep): E(f'ds_read_b128 {r(RX+4*i,4)}, v{a0} offset:{1024*mt}')
        for i, mt in enumerate(keep):
            finish(mt, i, len(keep))
        if not kh: E(f's_branch {tag}_xe')
    E(f'{tag}_xe:')

def kv_row(slot_expr_lds, y_sgpr):
    E(f'''s_mul_i32 s{t0}, s{y_sgpr}, 20480
    s_mul_i32 s{t1}, s{sW}, 2560
    s_add_u32 s{t0}, s{t0}, s{t1}
    s_mov_b32 m0, {slot_expr_lds}
    s_nop 0''')
    dma(vL16, SWS, f's{t0}', 0, 'sc1'); dma(vL16, SWS, f's{t0}', 1024, 'sc1')
    E('s_mov_b32 exec_hi, 0'); dma(vL16, SWS, f's{t0}', 2048, 'sc1'); E('s_mov_b32 exec_hi, -1')
def kv_rows(tag, i0, i1, both=False):
    E(f'''s_mul_i32 s{t2}, s{sKH}, {SETB}
    s_mul_i32 s{t3}, s{sNT}, 2560
    s_add_u32 s{t2}, s{t2}, s{t3}
    s_add_u32 s{t2}, s{t2}, {i0*BLK}
    s_add_u32 s{t3}, s{sJ}, {i0-1}
    s_mov_b32 s{t4}, {i0}
    {tag}:
    s_cmp_ge_u32 s{t3}, 7
    s_cselect_b32 s{t5}, 7, 0
    s_sub_u32 s{t3}, s{t3}, s{t5}
    s_lshr_b32 s{t5}, s{sTB}, 2
    s_add_u32 s{t5}, s{t5}, s{t3}
    s_add_u32 s{t5}, s{t5}, 1
    s_and_b32 s{t5}, s{t5}, 7''')
    kv_row(f's{t2}', t5)
    if both:
        E(f's_add_u32 m0, s{t2}, {SETB}\ns_add_u32 s{t0}, s{t0}, {BLK}')
        dma(vL16, SWS, f's{t0}', 0, 'sc1'); dma(vL16, SWS, f's{t0}', 1024, 'sc1')
        E('s_mov_b32 exec_hi, 0'); dma(vL16, SWS, f's{t0}', 2048, 'sc1'); E('s_mov_b32 exec_hi, -1')
    E(f'''s_add_u32 s{t2}, s{t2}, {BLK}
    s_add_u32 s{t3}, s{t3}, 1
    s_add_u32 s{t4}, s{t4}, 1
    s_cmp_lt_u32 s{t4}, {i1}
    s_cbranch_scc1 {tag}''')
def kv_row0():
    E(f'''s_mul_i32 s{t2}, s{sKH}, {SETB}
    s_mul_i32 s{t3}, s{sNT}, 2560
    s_add_u32 s{t2}, s{t2}, s{t3}
    s_lshr_b32 s{t5}, s{sTB}, 2''')
    kv_row(f's{t2}', t5)

def wo_issue(tag, nwaves, widx, p0, p1):
    E(f'''s_mov_b32 s{t2}, s{widx}
    s_mov_b32 exec_hi, 0xff
    {tag}:
    s_lshr_b32 s{t3}, s{t2}, 5
    s_add_u32 s{t3}, s{t3}, {p0}''')
    mod5(t4, f's{sROT}', f's{t3}')
    E(f'''s_mul_i32 s{t4}, s{t4}, 163840
    s_bfe_u32 s{t5}, s{t2}, 0x20003
    s_mul_i32 s{t5}, s{t5}, 40960
    s_add_u32 s{t4}, s{t4}, s{t5}
    s_and_b32 s{t5}, s{t2}, 3
    s_mul_i32 s{t5}, s{t5}, 10240
    s_add_u32 s{t4}, s{t4}, s{t5}
    s_bfe_u32 s{t5}, s{t2}, 0x10002
    s_mul_i32 s{t5}, s{t5}, 5120
    s_add_u32 s{t4}, s{t4}, s{t5}
    s_mul_i32 s{t5}, s{t2}, 640
    s_add_u32 m0, s{t5}, {T_W + ((p0+2) % 5)*20480}
    s_add_u32 s{t2}, s{t2}, {nwaves}''')
    dma(vW40, SW, f's{t4}')
    E(f'''s_cmp_lt_u32 s{t2}, {32*(p1-p0)}
    s_cbranch_scc1 {tag}
    s_mov_b32 exec_hi, -1''')

def spin(tag, issue, check, first_issued=True, sleep=2):
    E(f's_mov_b32 s{t6}, 0')
    if not first_issued: issue()
    E(f'{tag}_sp:')
    check()
    E(f'''s_cbranch_scc1 {tag}_ok
    s_add_u32 s{t6}, s{t6}, 1
    s_cmp_gt_u32 s{t6}, {SPINMAX}
    s_cbranch_scc1 {tag}_ok
    s_sleep {sleep}''')
    issue()
    E(f's_branch {tag}_sp\n{tag}_ok:')

def period(t):
    cur, nxt = P[t & 1], P[(t+1) & 1]
    vp, vc = VV[(t+1) & 1], VV[t & 1]
    km = KM[(t+1) & 1]
    kt, abid = [(KX, 1), (KY, 0), (KY, 1), (KX, 0)][t]
    e = lambda a, b: [E(f'v_exp_f32 v{cur+i}, v{cur+i}') for i in range(a, b)]
    e(0, 2)
    E(smf(OB, vp+4, nxt+24))
    if t == 0: E('a_in:')
    if t == 2:
        E(f's_bitcmp1_b32 s{sHOOK}, s{sIT}\ns_cbranch_scc1 a_hook\na_hookret:')
    tv, tk = t+1, t+2
    E(f'''s_waitcnt lgkmcnt(0)
    s_mov_b64 exec, {sr(sMASK,2)}
    ds_read_b128 {r(vp,4)}, v{ADDR} offset:{(tv>>2)*BLK+off_v(tv&3,0)}
    ds_read_b128 {r(vp+4,4)}, v{ADDR} offset:{(tv>>2)*BLK+off_v(tv&3,1)}
    s_mov_b64 exec, -1
    ds_read_b128 {r(KM[tk&1],4)}, v{ADDR} offset:{(tk>>2)*BLK+(tk&3)*512}''')
    if t == 0: E(f'ds_read_b64 {r(KY,2)}, v{ADDR} offset:{OFF_KT+8}')
    if t == 2: E(f'ds_read_b64 {r(KX,2)}, v{ADDR} offset:{BLK+OFF_KT}')
    e(2, 6)
    E(f'v_mfma_f32_32x32x4_2b_bf16 {r(nxt,32)}, {r(kt,2)}, {r(QT,2)}, {r(NEGM,32)} cbsz:1 abid:{abid}')
    e(6, 14)
    E(smf(OA, vc, cur))
    e(14, 18)
    E(smf(OA, vc+4, cur+8))
    e(18, 22)
    E(f'v_mfma_f32_32x32x16_bf16 {r(nxt,16)}, {r(km,4)}, {r(QA,4)}, {r(nxt,16)}')
    e(22, 26)
    E(smf(OB, vc, cur+16))
    e(26, 29)
    E(f'v_mfma_f32_32x32x16_bf16 {r(nxt+16,16)}, {r(km,4)}, {r(QB,4)}, {r(nxt+16,16)}')
    e(29, 32)

def first_reads():
    E(f'''ds_read_b64 {r(KX,2)}, v{ADDR} offset:{OFF_KT}
    ds_read_b128 {r(KM[0],4)}, v{ADDR}
    s_mov_b64 exec, {sr(sMASK,2)}
    ds_read_b128 {r(VV[0],4)}, v{ADDR} offset:{off_v(0,0)}
    ds_read_b128 {r(VV[0]+4,4)}, v{ADDR} offset:{off_v(0,1)}
    s_mov_b64 exec, -1
    ds_read_b128 {r(KM[1],4)}, v{ADDR} offset:512''')
def attn_addr():
    E(f'''v_and_b32 v{a1}, 31, v{vL}
    v_lshrrev_b32 v{a2}, 5, v{vL}
    v_mul_u32_u24 v{a2}, {HALF}, v{a2}
    v_lshl_add_u32 v{a3}, v{a1}, 4, v{a2}
    s_mul_i32 s{t0}, s{sKH}, {SETB}
    v_add_u32 v{ADDR}, s{t0}, v{a3}''')

def kernel():
    E(f'.globl {K}\n.p2align 8\n.type {K},@function\n{K}:')
    E(f'''s_cmp_ge_u32 s2, 256
    s_cbranch_scc1 k_end
    s_load_dwordx16 s[64:79], s[0:1], 0
    s_load_dwordx8 s[80:87], s[0:1], 64
    s_load_dwordx4 s[88:91], s[0:1], 96''')
    if STAMPS: E('s_waitcnt lgkmcnt(0)')
    stamp(0, True); stamp(1)
    E(f'''v_lshrrev_b32 v1, 6, v0
    v_and_b32 v{vL}, 63, v0
    v_readfirstlane_b32 s{sW}, v1
    s_and_b32 s{sTB}, s2, 7
    s_lshl_b32 s{sTB}, s{sTB}, 2
    s_lshr_b32 s{sROT}, s2, 6
    s_or_b32 s{sTB}, s{sTB}, s{sROT}
    s_bfe_u32 s{sJ}, s2, 0x30003
    s_lshr_b32 s{sNP}, s{sJ}, 1
    s_and_b32 s{sNT}, s{sW}, 3
    s_lshr_b32 s{sKH}, s{sW}, 2
    v_lshlrev_b32 v{vL16}, 4, v{vL}
    v_mov_b32 v{a0}, {L_CNT}
    v_mov_b32 v{a1}, 0
    ds_write_b32 v{a0}, v{a1}''')
    E(f'''v_lshrrev_b32 v{a0}, 3, v{vL}
    v_mul_u32_u24 v{vXa}, 1280, v{a0}
    v_lshrrev_b32 v{a0}, 4, v{vL}
    v_xor_b32 v{a0}, v{a0}, v{vL}
    v_and_b32 v{a0}, 7, v{a0}
    v_lshl_add_u32 v{vXa}, v{a0}, 4, v{vXa}
    v_xor_b32 v{vXb}, 64, v{vXa}
    s_mul_i32 s{t2}, s{sTB}, 81920
    s_waitcnt lgkmcnt(0)
    s_barrier''')
    srd(SX, pX, XBYTES)
    E(f's_cmp_lt_u32 s{sW}, 5\ns_cbranch_scc0 f_w567')
    E('s_setprio 3')
    mod5(t3, f's{sROT}', f's{sW}')
    E(f'''s_mul_i32 s{t0}, s{sNP}, 20480
    s_add_u32 s{t0}, s{t0}, s{t2}
    s_lshl_b32 s{t1}, s{t3}, 8
    s_add_u32 s{t0}, s{t0}, s{t1}
    s_mul_i32 s{t4}, s{sNP}, 20480
    s_lshl_b32 s{t1}, s{sW}, 11
    s_add_u32 s{t4}, s{t4}, s{t1}
    s_mov_b32 m0, s{t4}
    s_add_u32 s{t1}, s{t0}, 128''')
    dma(vXa, SX, f's{t0}')
    E(f's_add_u32 m0, s{t4}, 1024\ns_add_u32 s{t0}, s{t0}, 10240'); dma(vXa, SX, f's{t1}')
    E(f's_add_u32 m0, s{t4}, 10240\ns_add_u32 s{t1}, s{t0}, 128'); dma(vXb, SX, f's{t0}')
    E(f's_add_u32 m0, s{t4}, 11264\ns_bitcmp1_b32 s{sJ}, 0'); dma(vXb, SX, f's{t1}')
    E(f's_cselect_b32 s{pWK}, s{pWV}, s{pWK}\ns_cselect_b32 s{pWK+1}, s{pWV+1}, s{pWK+1}')
    srd(SE, pWK, 25600)
    E(f'''s_mul_i32 s{t0}, s{t3}, 5120
    s_mul_i32 s{t1}, s{sW}, 5120
    s_add_u32 m0, s{t1}, {L_WKV}
    s_add_u32 s{t5}, s{t0}, 4096''')
    for i in range(4): dma(vL16, SE, f's{t0}', 1024*i)
    E(f's_add_u32 m0, s{t1}, {L_WKV+4096}\ns_nop 0'); dma(vL16, SE, f's{t5}')
    RG, XF, CA = 32, 48, 96
    E(f's_bitcmp1_b32 s{sJ}, 0\ns_cbranch_scc1 f_norg')
    srd(SF, pWR, 1280); srd(SD, pGW, 1280)
    E(f'''v_and_b32 v{a0}, 48, v{vL}
    s_lshl_b32 s{t0}, s{t3}, 8
    s_mov_b32 exec_lo, 0x00010001
    s_mov_b32 exec_hi, 0x00010001''')
    for i in range(4): E(f'buffer_load_dwordx4 {r(RG+4*i,4)}, v{a0}, {sr(SF,4)}, s{t0} offen offset:{64*i}')
    E('s_mov_b32 exec_lo, 0x00020002\ns_mov_b32 exec_hi, 0x00020002')
    for i in range(4): E(f'buffer_load_dwordx4 {r(RG+4*i,4)}, v{a0}, {sr(SD,4)}, s{t0} offen offset:{64*i}')
    E('s_mov_b64 exec, -1\nf_norg:')
    srd(SW, pWQ, WBYTES)
    E(f'''s_lshl_b32 s{t0}, s{sW}, 6
    v_add_u32 v{a0}, s{t0}, v{vL}
    v_mul_u32_u24 v{a1}, 6554, v{a0}
    v_lshrrev_b32 v{a1}, 16, v{a1}
    v_mul_u32_u24 v{a2}, 10, v{a1}
    v_sub_u32 v{a2}, v{a0}, v{a2}
    v_bfe_u32 v{a3}, v{a1}, 2, 2
    v_lshlrev_b32 v{a3}, 3, v{a3}
    v_lshrrev_b32 v{a4}, 4, v{a1}
    v_lshl_add_u32 v{a3}, v{a4}, 2, v{a3}
    v_and_b32 v{a4}, 3, v{a1}
    v_add_u32 v{a3}, v{a3}, v{a4}
    v_mul_u32_u24 v{vWo}, 1280, v{a3}
    v_lshl_add_u32 v{vWo}, v{a2}, 4, v{vWo}
    s_mul_i32 s{t0}, s{sJ}, 160
    v_add_u32 v{vWo}, s{t0}, v{vWo}''')
    E(f'''v_bfe_u32 v{a0}, v{vL}, 3, 1
    v_mul_u32_u24 v{a0}, 10240, v{a0}
    v_and_b32 v{a1}, 7, v{vL}
    v_lshl_add_u32 v{a0}, v{a1}, 7, v{a0}
    v_bfe_u32 v{a1}, v{vL}, 1, 3
    v_lshrrev_b32 v{a2}, 4, v{vL}
    v_xor_b32 v{a1}, v{a1}, v{a2}
    v_lshl_add_u32 v{a0}, v{a1}, 4, v{a0}
    v_add_u32 v{a0}, s{t4}, v{a0}
    v_xor_b32 v{a1}, 64, v{a0}
    v_lshlrev_b32 v{a2}, 3, v{a2}
    v_bfe_u32 v{a3}, v{vL}, 2, 2
    v_add_u32 v{a2}, v{a2}, v{a3}
    v_mul_u32_u24 v{a2}, 40, v{a2}
    v_and_b32 v{a3}, 3, v{vL}
    v_lshl_add_u32 v{a2}, v{a3}, 3, v{a2}
    s_mul_i32 s{t0}, s{sW}, 5120
    s_add_u32 s{t0}, s{t0}, {L_WKV}
    v_add_u32 v{a2}, s{t0}, v{a2}
    s_mul_i32 s{t0}, s{sW}, 3072
    s_add_u32 s{t0}, s{t0}, {L_PART}
    v_add_u32 v{a3}, s{t0}, v{vL16}''')
    stamp(2)
    E('s_waitcnt vmcnt(0)')
    stamp(3)
    for kk in range(4):
        E(f'ds_read_b128 {r(XF+4*kk,4)}, v{a1 if kk & 1 else a0} offset:{(kk>>1)*1024}')
        for e in range(2):
            for s in range(2):
                E(f'ds_read_b64_tr_b16 {r(8*kk+4*e+2*s,2)}, v{a2} offset:{kk*1280 + s*160 + e*8}')
    E(f's_bitcmp1_b32 s{sJ}, 0\ns_cbranch_scc1 f_mv')
    for kk in range(4):
        E(f's_waitcnt lgkmcnt({5*(3-kk)})')
        for e, src in enumerate((8*kk, 8*kk+4, RG+4*kk)):
            c = '0' if kk == 0 else r(CA+4*e, 4)
            E(f'v_mfma_f32_16x16x32_bf16 {r(CA+4*e,4)}, {r(src,4)}, {r(XF+4*kk,4)}, {c}')
    E('s_branch f_md\nf_mv:')
    for kk in range(4):
        E(f's_waitcnt lgkmcnt({5*(3-kk)})')
        for e in range(2):
            c = '0' if kk == 0 else r(CA+4*e, 4)
            E(f'v_mfma_f32_16x16x32_bf16 {r(CA+4*e,4)}, {r(XF+4*kk,4)}, {r(8*kk+4*e,4)}, {c}')
    E(f'''f_md:
    v_mov_b32 v{a0}, {L_CNT}
    v_mov_b32 v{a1}, 1
    s_nop 5
    ds_write_b128 v{a3}, {r(CA,4)}
    ds_write_b128 v{a3}, {r(CA+4,4)} offset:1024
    s_mov_b64 exec, 0xffff
    ds_write_b128 v{a3}, {r(CA+8,4)} offset:2048
    s_mov_b64 exec, 1
    s_waitcnt lgkmcnt(0)
    ds_add_u32 v{a0}, v{a1}
    s_mov_b64 exec, -1
    s_setprio 1''')
    stamp(4)
    w_issue(0, L_W1); w_issue(1, L_W1+20480)
    srd(SWS, pWS, WS_SIZE)
    E('s_branch f_x0')
    E(f'''f_w567:''')
    srd(SWS, pWS, WS_SIZE)
    E(f'''s_cmp_eq_u32 s{sW}, 7
    s_cbranch_scc1 f_w7
    s_setprio 2
    s_sub_u32 s{t3}, s{sW}, 5
    s_lshl_b32 s{t0}, s{t3}, 6
    v_xor_b32 v{vXa}, s{t0}, v{vXa}
    s_mov_b32 s{t4}, 1
    f_xo:
    s_add_u32 s{t5}, s{sNP}, s{t4}
    s_and_b32 s{t5}, s{t5}, 3
    s_lshl_b32 s{t5}, s{t5}, 1
    s_add_u32 s{t5}, s{t5}, s{t3}
    s_mul_i32 s{t5}, s{t5}, 10240
    s_mov_b32 s{t6}, 0
    f_xi:''')
    mod5(t0, f's{sROT}', f's{t6}')
    E(f'''s_lshl_b32 s{t0}, s{t0}, 8
    s_add_u32 s{t0}, s{t0}, s{t5}
    s_add_u32 s{t0}, s{t0}, s{t2}
    s_lshl_b32 s{t1}, s{t6}, 11
    s_add_u32 s{t1}, s{t1}, s{t5}
    s_mov_b32 m0, s{t1}
    s_add_u32 s{t7}, s{t0}, 128''')
    dma(vXa, SX, f's{t0}')
    E(f's_add_u32 m0, s{t1}, 1024\ns_add_u32 s{t6}, s{t6}, 1'); dma(vXa, SX, f's{t7}')
    E(f'''s_cmp_lt_u32 s{t6}, 5
    s_cbranch_scc1 f_xi
    s_add_u32 s{t4}, s{t4}, 1
    s_cmp_lt_u32 s{t4}, 4
    s_cbranch_scc1 f_xo''')
    stamp(2)
    E('s_waitcnt vmcnt(0)\ns_setprio 1\ns_branch f_x0')
    E('f_w7:\ns_setprio 3')
    srd(SD, pDBG, 256)
    E(f'''v_mov_b32 v0, 0
    v_mov_b32 v1, 0
    v_mov_b32 v2, 0
    v_mov_b32 v3, 0
    v_lshlrev_b32 v{a7}, 7, v{vL}
    s_cmp_eq_u32 s2, 0
    s_cbranch_scc0 f_ngo
    s_mov_b32 s{t0}, {WS_FLAG}
    buffer_store_dwordx4 v[0:3], v{a7}, {sr(SWS,4)}, s{t0} offen sc1
    v_mov_b32 v4, 1
    s_waitcnt vmcnt(0)
    s_mov_b64 exec, 1
    buffer_store_dword v4, v0, {sr(SD,4)}, 0 offen sc1
    s_mov_b64 exec, -1
    f_ngo:
    s_mul_i32 s{t0}, s2, 320
    s_add_u32 s{t0}, s{t0}, {WS_Z}
    s_mov_b64 exec, 0xfffff
    buffer_store_dwordx4 v[0:3], v{vL16}, {sr(SWS,4)}, s{t0} offen sc1
    s_mov_b64 exec, -1
    v_mov_b32 v4, -1
    v_mov_b32 v5, -1
    v_mov_b32 v6, -1
    v_mov_b32 v7, -1
    s_mul_i32 s{t0}, s{sJ}, 2560
    s_add_u32 s{t0}, s{t0}, s{t2}
    s_add_u32 s{t0}, s{t0}, {WS_O}
    s_add_u32 s{t1}, s{t0}, 81920
    f_cl:
    buffer_store_dwordx4 v[4:7], v{vL16}, {sr(SWS,4)}, s{t0} offen sc1
    buffer_store_dwordx4 v[4:7], v{vL16}, {sr(SWS,4)}, s{t0} offen offset:1024 sc1
    s_mov_b32 exec_hi, 0
    buffer_store_dwordx4 v[4:7], v{vL16}, {sr(SWS,4)}, s{t0} offen offset:2048 sc1
    s_mov_b32 exec_hi, -1
    s_add_u32 s{t0}, s{t0}, 20480
    s_cmp_lt_u32 s{t0}, s{t1}
    s_cbranch_scc1 f_cl''')
    E(f'''v_add_u32 v{a0}, {L_PART}, v{vL16}
    s_lshr_b32 s{t3}, s{sTB}, 1
    s_mul_i32 s{t3}, s{t3}, 10240
    s_lshl_b32 s{t4}, s{sTB}, 1
    s_lshr_b32 s{t5}, s{sNP}, 1
    s_add_u32 s{t4}, s{t4}, s{t5}
    s_and_b32 s{t4}, s{t4}, 3
    s_and_b32 s{t5}, s{sNP}, 1
    v_and_b32 v{a4}, 15, v{vL}
    v_bfe_u32 v{a5}, v{vL}, 4, 1
    v_lshrrev_b32 v{a6}, 5, v{vL}
    s_bitcmp1_b32 s{sJ}, 0
    s_cbranch_scc1 f_av
    v_add_u32 v{a1}, {L_PART+1792}, v{vL16}
    v_mul_u32_u24 v{a2}, 5120, v{a5}
    v_lshl_add_u32 v{a2}, v{a4}, 4, v{a2}
    v_lshl_add_u32 v{a2}, v{a6}, 3, v{a2}
    s_lshl_b32 s{t0}, s{t4}, 9
    s_lshl_b32 s{t1}, s{t5}, 8
    s_add_u32 s{t0}, s{t0}, s{t1}
    v_add_u32 v{a2}, s{t0}, v{a2}
    s_and_b32 s{t0}, s{t4}, 1
    s_mul_i32 s{t0}, s{t0}, 5120
    s_add_u32 s{t0}, s{t0}, s{t1}
    s_lshr_b32 s{t1}, s{t4}, 1
    s_lshl_b32 s{t1}, s{t1}, 3
    s_add_u32 s{t0}, s{t0}, s{t1}
    s_add_u32 s{t0}, s{t0}, {OFF_KT}
    v_add_u32 v{a3}, s{t0}, v{vL16}
    s_branch f_ae
    f_av:
    v_lshrrev_b32 v{a3}, 2, v{a4}
    v_lshlrev_b32 v{a1}, 8, v{a3}
    v_and_b32 v8, 3, v{vL}
    v_lshl_add_u32 v{a1}, v8, 4, v{a1}
    v_add_u32 v{a1}, {L_PART+1024+192}, v{a1}
    v_mul_u32_u24 v{a2}, 5120, v{a6}
    v_lshl_add_u32 v{a2}, v{a4}, 4, v{a2}
    v_lshl_add_u32 v{a2}, v{a5}, 3, v{a2}
    s_lshl_b32 s{t0}, s{t4}, 1
    s_add_u32 s{t0}, s{t0}, s{t5}
    s_mul_i32 s{t0}, s{t0}, 320
    s_add_u32 s{t0}, s{t0}, 2048
    v_add_u32 v{a2}, s{t0}, v{a2}
    v_lshrrev_b32 v9, 1, v{a3}
    v_mul_u32_u24 v9, 5120, v9
    v_lshl_add_u32 v9, v8, 4, v9
    v_and_b32 v{a3}, 1, v{a3}
    v_lshl_add_u32 v{a3}, v{a3}, 3, v9
    s_add_u32 s{t0}, s{t0}, 256
    v_add_u32 v{a3}, s{t0}, v{a3}
    f_ae:
    v_mov_b32 v{a5}, {L_CNT}''')
    def iss(): E(f'ds_read_b32 v8, v{a5}')
    def chk(): E(f's_waitcnt lgkmcnt(0)\nv_readfirstlane_b32 s{t0}, v8\ns_nop 0\ns_cmp_ge_u32 s{t0}, 5')
    stamp(2)
    spin('f_c', iss, chk, first_issued=False, sleep=1)
    stamp(3)
    E(f'buffer_load_dword v{PL}, v0, {sr(SD,4)}, 0 offen sc1')
    for q in range(5):
        E(f'ds_read_b128 {r(8+8*q,4)}, v{a0} offset:{3072*q}\nds_read_b128 {r(12+8*q,4)}, v{a1} offset:{3072*q}')
    for q in range(1, 5):
        E(f's_waitcnt lgkmcnt({2*(4-q)})')
        for h in range(4): E(f'v_pk_add_f32 {r(8+2*h,2)}, {r(8+2*h,2)}, {r(8+8*q+2*h,2)}')
    E(f'''v_cvt_pk_bf16_f32 v16, v8, v9
    v_cvt_pk_bf16_f32 v17, v10, v11
    v_cvt_pk_bf16_f32 v18, v12, v13
    v_cvt_pk_bf16_f32 v19, v14, v15
    buffer_store_dwordx2 v[16:17], v{a2}, {sr(SWS,4)}, s{t3} offen sc1
    s_mov_b64 exec, 0xffff
    buffer_store_dwordx2 v[18:19], v{a3}, {sr(SWS,4)}, s{t3} offen sc1
    s_mov_b64 exec, -1
    s_mov_b32 s{t1}, 1
    s_bitcmp1_b32 s{sJ}, 0
    s_cbranch_scc1 f_nk
    v_mul_f32 v13, {fbits(-LOG2E)}, v13
    v_exp_f32 v13, v13
    s_lshl_b32 s{t0}, s{sTB}, 6
    s_lshl_b32 s{t1}, s{sNP}, 4
    s_add_u32 s{t0}, s{t0}, s{t1}
    v_add_f32 v13, 1.0, v13
    v_rcp_f32 v13, v13
    v_add_u32 v20, s{t0}, v{a4}
    v_lshlrev_b32 v21, 2, v20
    s_mov_b32 s{t0}, {WS_G}
    s_mov_b32 exec_lo, 0xffff0000
    s_mov_b32 exec_hi, 0
    buffer_store_dword v13, v21, {sr(SWS,4)}, s{t0} offen sc1
    s_mov_b64 exec, -1
    v_sub_u32 v20, 2047, v20
    v_ashrrev_i32 v22, 31, v12
    v_or_b32 v22, 0x80000000, v22
    v_xor_b32 v22, v22, v12
    v_and_b32 v22, 0xfffff800, v22
    v_or_b32 v22, v22, v20''')
    for sh in (1, 2, 4, 8): E(f's_nop 1\nv_max_u32_dpp v22, v22, v22 row_shr:{sh}')
    E(f'''s_nop 1
    v_readlane_b32 s{t1}, v22, 31
    s_nop 1
    s_max_u32 s{t1}, s{t1}, 1
    f_nk:
    v_mov_b32 v20, s{t1}
    s_and_b32 s{t0}, s2, 63
    s_lshl_b32 s{t0}, s{t0}, 7
    s_lshr_b32 s{t1}, s2, 6
    s_lshl_b32 s{t1}, s{t1}, 2
    s_add_u32 s{t0}, s{t0}, s{t1}
    s_add_u32 s{t3}, s{t0}, {WS_FLAG}''')
    def iss(): E(f'buffer_load_dword v{PL}, v0, {sr(SD,4)}, 0 offen sc1')
    def chk(): E(f's_waitcnt vmcnt(0)\nv_readfirstlane_b32 s{t0}, v{PL}\ns_nop 0\ns_cmp_lg_u32 s{t0}, 0')
    spin('f_g', iss, chk)
    E(f'''s_mov_b64 exec, 1
    buffer_store_dword v20, v0, {sr(SWS,4)}, s{t3} offen sc1
    s_mov_b64 exec, -1
    s_setprio 1''')
    stamp(4)
    E('f_x0:')
    E(f'''v_bfe_u32 v{a0}, v{vL}, 3, 1
    v_mul_u32_u24 v{a0}, 10240, v{a0}
    v_and_b32 v{a1}, 7, v{vL}
    v_lshl_add_u32 v{a0}, v{a1}, 7, v{a0}
    v_bfe_u32 v{a1}, v{vL}, 1, 3
    v_lshrrev_b32 v{a2}, 4, v{vL}
    v_xor_b32 v{a1}, v{a1}, v{a2}
    v_lshl_add_u32 v{a0}, v{a1}, 4, v{a0}
    s_mul_i32 s{t0}, s{sNT}, 20480
    s_lshl_b32 s{t1}, s{sKH}, 10
    s_add_u32 s{t0}, s{t0}, s{t1}
    v_add_u32 v{a0}, s{t0}, v{a0}
    v_xor_b32 v{a1}, 64, v{a0}
    v_lshrrev_b32 v{a2}, 2, v{vL}
    v_mul_u32_u24 v{vTr}, 160, v{a2}
    v_and_b32 v{a2}, 3, v{vL}
    v_lshl_add_u32 v{vTr}, v{a2}, 3, v{vTr}
    s_mul_i32 s{t0}, s{sKH}, 10240
    s_add_u32 s{t0}, s{t0}, {L_W1}
    v_add_u32 v{vTr}, s{t0}, v{vTr}''')
    stamp(5)
    E('s_barrier')
    stamp(6)
    for p in range(5):
        for s in range(2): E(f'ds_read_b128 {r(XB+8*p+4*s,4)}, v{a1 if s else a0} offset:{p*2048}')
    attn_addr()
    E(f'''v_mov_b32 v{IDX}, 0xdddd
    v_cmp_eq_u32 vcc, 20, v{a1}
    v_mov_b32 v{a2}, 0x3f803f80
    s_mov_b32 s{sMASK}, 0xfffff
    s_mov_b32 s{sMASK+1}, 0xfffff''')
    for i in range(16): E(f'v_cndmask_b32 v{VV[0]+i}, 0, v{a2}, vcc')
    E('s_waitcnt lgkmcnt(0)\ns_barrier')
    stamp(7)
    E(f's_cmp_lt_u32 s{sW}, 5\ns_cbranch_scc0 g_n0')
    w_issue(2, L_W2); w_issue(3, L_W2+20480)
    E('g_n0:')
    for i in range(32): E(f'v_mov_b32 v{OA+i}, 0')
    FL = lambda: E(f'buffer_load_dwordx4 {r(PL,4)}, v{a6}, {sr(SWS,4)}, s{t3} offen sc1')
    def FC():
        E(f'''s_waitcnt vmcnt(0)
        v_min3_u32 v{a5}, v{PL}, v{PL+1}, v{PL+2}
        v_min_u32 v{a5}, v{a5}, v{PL+3}
        v_cmp_eq_u32 vcc, 0, v{a5}
        s_nop 1
        s_cmp_eq_u64 vcc, 0''')
    for p, wt in enumerate((12, 12, 8, 4, 0)):
        if p == 4:
            E(f's_cmp_eq_u32 s{sW}, 7\ns_cbranch_scc0 g_n4\ns_mov_b32 s{t3}, {WS_FLAG}')
            spin('g_l', FL, FC)
            E('g_n4:')
        E(f's_waitcnt vmcnt({wt})\ns_barrier')
        stamp(8+p)
        if p == 2: E(f'v_add_u32 v{vTr}, {L_W2 - L_W1 + (1 << 32)}, v{vTr}')
        rd, mm = gemm_stage(p == 0, (p if p < 2 else p-2)*20480, XB+8*p)
        def mid():
            if p == 0:
                E(f's_cmp_lt_u32 s{sW}, 5\ns_cbranch_scc0 g_n1')
                w_issue(4, L_W2+40960)
                E('g_n1:')
            if p == 3:
                E(f'''s_cmp_eq_u32 s{sW}, 7
                s_cbranch_scc0 g_n3
                v_and_b32 v{a6}, 7, v{vL}
                v_lshlrev_b32 v{a6}, 10, v{a6}
                s_and_b32 s{t0}, s2, 7
                s_lshl_b32 s{t0}, s{t0}, 7
                v_add_u32 v{a6}, s{t0}, v{a6}
                s_mov_b32 s{t3}, {WS_FLAG}''')
                FL()
                E('g_n3:')
            if p == 4:
                kv_row0()
        gemm_run(rd, mm, mid)
    stamp(13)
    def preq():
        E(f'''s_cmp_eq_u32 s{sW}, 7
        s_cbranch_scc0 g_n5
        v_lshlrev_b32 v{a6}, 7, v{vL}
        s_mov_b32 s{t3}, {WS_FLAG}''')
        FL()
        E(f'''g_n5:
        s_lshr_b32 s{t0}, s{sNT}, 1
        s_mul_i32 s{t0}, s{t0}, 3072
        s_and_b32 s{t1}, s{sNT}, 1
        s_lshl_b32 s{t1}, s{t1}, 8
        s_add_u32 s{t0}, s{t0}, s{t1}
        s_add_u32 s{t0}, s{t0}, {L_QF}
        v_and_b32 v{a2}, 15, v{vL}
        v_lshl_add_u32 v{a1}, v{a2}, 4, s{t0}
        v_and_b32 v{a3}, 48, v{vL}
        s_mov_b32 s{t2}, {fbits(QSCALE)}''')
    def finq(mt, i, n):
        c = 0
        for g in range(4):
            p = 4*mt + g; hd, sub = divmod(p, 5)
            o = (hd >> 1)*6144 + ((hd & 1)*1024 + (sub & 1)*512 + (sub >> 1)*8 if sub < 4 else 2048 + (hd & 1)*512)
            c |= o << (16*g)
        a = ACC + 4*mt
        E(f'''s_mov_b32 s50, {c & 0xffffffff:#x}
        s_mov_b32 s51, {c >> 32:#x}
        v_lshrrev_b64 {r(a4,2)}, v{a3}, s[50:51]
        v_and_b32 v{a4}, 0xffff, v{a4}
        v_add_u32 v{a4}, v{a4}, v{a1}
        s_waitcnt lgkmcnt({n-1})''')
        for q in range(4): E(f'v_add_f32 v{a+q}, v{a+q}, v{RX+4*i+q}')
        for q in range(4): E(f'v_mul_f32 v{a+q}, s{t2}, v{a+q}')
        E(f'''v_cvt_pk_bf16_f32 v{a}, v{a}, v{a+1}
        v_cvt_pk_bf16_f32 v{a+1}, v{a+2}, v{a+3}
        ds_write_b64 v{a4}, {r(a,2)}''')
    exchange('q', L_QX, finq, preq)
    E(f's_cmp_eq_u32 s{sW}, 7\ns_cbranch_scc0 g_n6\ns_mov_b32 s{t3}, {WS_FLAG}')
    spin('g_g', FL, FC)
    E(f'v_max3_u32 v{a5}, v{PL}, v{PL+1}, v{PL+2}\nv_max_u32 v{a5}, v{a5}, v{PL+3}')
    wave_max_u32(a5)
    E(f'''v_mov_b32 v{a4}, {L_KEY}
    s_mov_b32 exec_lo, 0
    s_mov_b32 exec_hi, 0x80000000
    ds_write_b32 v{a4}, v{a5}
    s_mov_b64 exec, -1
    g_n6:
    s_mul_i32 s{t0}, s{sNT}, 3072
    s_add_u32 s{t0}, s{t0}, {L_QF}
    s_lshl_b32 s{t1}, s{sKH}, 10
    s_add_u32 s{t2}, s{t0}, s{t1}
    v_add_u32 v{a0}, s{t2}, v{vL16}
    s_xor_b32 s{t1}, s{t1}, 1024
    s_add_u32 s{t2}, s{t0}, s{t1}
    v_add_u32 v{a1}, s{t2}, v{vL16}
    s_lshl_b32 s{t1}, s{sKH}, 9
    v_xor_b32 v{a2}, s{t1}, v{vL16}
    v_add_u32 v{a2}, s{t0}, v{a2}
    v_mov_b32 v{a3}, {L_KEY}
    v_mov_b32 v{a4}, 0x3f80
    v_mov_b32 v{a5}, 0
    s_mov_b32 s{sMODE}, 0
    s_mov_b32 s{sIT}, 0
    v_mul_u32_u24 v{a6}, 6554, v{vL}
    v_lshrrev_b32 v{a6}, 16, v{a6}
    v_mul_u32_u24 v{vW40}, 1120, v{a6}
    s_mul_i32 s{t0}, s{sJ}, 160
    v_add3_u32 v{vW40}, v{vW40}, v{vL16}, s{t0}
    s_setprio 0''')
    srd(SW, pWO, WBYTES)
    stamp(14)
    E('s_waitcnt vmcnt(0) lgkmcnt(0)\ns_barrier')
    stamp(15)
    E(f'''ds_read_b64 {r(QT,2)}, v{a2} offset:2048
    ds_read_b128 {r(QA,4)}, v{a0}
    ds_read_b128 {r(QB,4)}, v{a1}
    ds_read_b32 v{a6}, v{a3}''')
    first_reads()
    kv_rows('a_r1', 1, 2)
    E(f'''s_waitcnt lgkmcnt(3)
    v_mfma_f32_32x32x4_2b_bf16 {r(P[0],32)}, {r(KX,2)}, {r(QT,2)}, 0 cbsz:1 abid:0
    v_readfirstlane_b32 s{sKEY}, v{a6}
    s_cmp_eq_u32 s{sKH}, 0
    s_cselect_b32 s{sHOOK}, 0, 0x2a
    s_xor_b32 s{sHOOK}, s{sHOOK}, 0x5d
    s_nop 13
    v_mfma_f32_32x32x16_bf16 {r(P[0],16)}, {r(KM[0],4)}, {r(QA,4)}, {r(P[0],16)}
    v_mfma_f32_32x32x16_bf16 {r(P[0]+16,16)}, {r(KM[0],4)}, {r(QB,4)}, {r(P[0]+16,16)}
    s_nop 10''')
    for b, d in ((0, 32), (16, 33)):
        E(f'v_max3_f32 v{d}, v{b}, v{b+1}, v{b+2}')
        for i in range(3, 15, 2): E(f'v_max3_f32 v{d}, v{d}, v{b+i}, v{b+i+1}')
        E(f'v_max_f32 v{d}, v{d}, v{b+15}')
    E(f'''s_nop 1
    v_permlane32_swap_b32 v32, v33
    v_max_f32 v32, v32, v33
    v_sub_f32 v32, {fbits(-XSHIFT)}, v32
    v_lshrrev_b32 v32, 16, v32
    v_mov_b32 v33, 0
    s_nop 1
    v_mfma_f32_32x32x4_2b_bf16 {r(P[0],32)}, {r(a4,2)}, {r(32,2)}, {r(P[0],32)}
    v_mfma_f32_32x32x4_2b_bf16 {r(NEGM,32)}, {r(a4,2)}, {r(32,2)}, 0
    s_nop 15
    s_nop 2''')
    stamp(16); stamp(40, True)
    E(f'''v_exp_f32 v0, v0
    v_exp_f32 v1, v1
    s_branch a_in''')
    E('.p2align 6\na_loop:')
    for t in range(4): period(t)
    if STAMPS:
        E(f'''s_memtime s[96:97]
        s_add_u32 s98, s{sIT}, 17
        s_mov_b32 m0, s98
        s_waitcnt lgkmcnt(0)
        v_writelane_b32 v254, s96, m0''')
    E(f'''v_add_u32 v{ADDR}, {BLK}, v{ADDR}
    s_add_u32 s{sIT}, s{sIT}, 1
    s_cmp_lt_u32 s{sIT}, 8
    s_cbranch_scc1 a_loop''')
    E(smf(OB, VV[1]+4, P[1]+24))
    stamp(41, True)
    XR, XF, vG, vEo, YT = 128, 136, 148, 149, 152
    E(f'''s_setprio 0
    s_mul_i32 s{t0}, s{sW}, 3328
    v_add_u32 v{a0}, s{t0}, v{vL16}
    s_xor_b32 s{t1}, s{sW}, 4
    s_mul_i32 s{t1}, s{t1}, 3328
    v_add_u32 v{a1}, s{t1}, v{vL16}
    v_lshl_add_u32 v{a6}, v{vL}, 2, s{t0}
    v_lshl_add_u32 v{a7}, v{vL}, 2, s{t1}
    v_mov_b32 v{a2}, 0
    v_mov_b32 v{a3}, {T_BAD}
    s_waitcnt lgkmcnt(0)
    s_barrier''')
    stamp(25)
    E('s_nop 3')
    for i in range(3): E(f'ds_write_b128 v{a0}, {r(OB+4*i,4)} offset:{T_OX+1024*i}')
    E(f'''ds_write_b32 v{a6}, v{NEGM+16} offset:{T_OX+3072}
    ds_write_b32 v{a3}, v{a2}''')
    wo_issue('t_w', 8, sW, 3, 5)
    E('s_waitcnt lgkmcnt(0)\ns_barrier')
    stamp(26)
    E(f'ds_read_b32 v12, v{a7} offset:{T_OX+3072}')
    for i in (2, 0, 1): E(f'ds_read_b128 {r(4*i,4)}, v{a1} offset:{T_OX+1024*i}')
    E(f'''s_and_b32 s{t0}, s{sNT}, 2
    s_add_u32 s{t0}, s{t0}, s{sKH}
    s_mul_i32 s{t0}, s{t0}, 5
    v_lshrrev_b32 v{a4}, 5, v{vL}
    v_add_u32 v{a4}, s{t0}, v{a4}
    v_and_b32 v{a5}, 1, v{a4}
    v_lshrrev_b32 v{a4}, 1, v{a4}
    v_lshlrev_b32 v{a4}, 8, v{a4}
    v_lshl_add_u32 v{a4}, v{a5}, 3, v{a4}
    v_and_b32 v{a5}, 15, v{vL}
    v_lshl_add_u32 v{a4}, v{a5}, 4, v{a4}
    v_bfe_u32 v{a5}, v{vL}, 4, 1
    v_mul_u32_u24 v{a5}, 2560, v{a5}
    s_and_b32 s{t0}, s{sNT}, 1
    s_mul_i32 s{t0}, s{t0}, 5120
    s_add_u32 s{t0}, s{t0}, {T_OS}
    v_add3_u32 v{a4}, v{a4}, v{a5}, s{t0}
    v_mov_b32 v16, v{OA+8}
    s_waitcnt lgkmcnt(2)
    v_min_f32 v13, v12, v{NEGM}
    v_sub_f32 v14, v13, v{NEGM}
    v_sub_f32 v15, v13, v12
    v_add_f32 v18, v14, v15
    v_exp_f32 v14, v14
    v_exp_f32 v15, v15
    v_max_f32 v19, v16, v8
    v_mul_f32 v16, v16, v14
    v_fmac_f32 v16, v8, v15
    s_mov_b32 s{t0}, {fbits(-100.0)}
    s_mov_b32 s{t1}, {fbits(2.0**100)}
    v_mov_b32 v17, v16
    v_cmp_nge_f32 vcc, v18, s{t0}
    v_cmp_nle_f32 s[50:51], v19, s{t1}
    v_permlane32_swap_b32 v16, v17
    v_rcp_f32 v16, v17
    s_and_b32 s50, s50, 0
    s_or_b64 s[50:51], s[50:51], vcc
    s_mov_b32 s{t0}, {fbits(2.0**-100)}
    v_cmp_nge_f32 vcc, v17, s{t0}
    v_mul_f32 v14, v14, v16
    v_mul_f32 v15, v15, v16
    s_or_b64 s[50:51], s[50:51], vcc
    s_waitcnt lgkmcnt(0)''')
    for i in range(12): E(f'v_mul_f32 v{OA+i}, v{OA+i}, v14')
    for i in range(12): E(f'v_fmac_f32 v{OA+i}, v{i}, v15')
    E(f'v_maximum3_f32 v3, |v{OA}|, |v{OA+1}|, |v{OA+2}|')
    for i in range(3, 11, 2): E(f'v_maximum3_f32 v3, v3, |v{OA+i}|, |v{OA+i+1}|')
    E(f'''v_maximum3_f32 v3, v3, |v{OA+11}|, |v{OA+11}|
    s_mov_b32 s{t0}, 0x7f800000
    v_cmp_nlt_f32 vcc, v3, s{t0}''')
    for i in range(6): E(f'v_cvt_pk_bf16_f32 v{4+i}, v{OA+2*i}, v{OA+2*i+1}')
    E(f's_or_b64 s[50:51], s[50:51], vcc\ns_cbranch_scc0 t_ok')
    for i in range(6): E(f'v_min_u32 v{4+i}, -2, v{4+i}')
    E(f'''v_mov_b32 v{a2}, 1
    ds_write_b32 v{a3}, v{a2}
    t_ok:
    ds_write_b64 v{a4}, v[4:5]
    ds_write_b64 v{a4}, v[6:7] offset:256
    s_mov_b32 exec_hi, 0
    ds_write_b64 v{a4}, v[8:9] offset:512
    s_mov_b32 exec_hi, -1
    s_mul_i32 s{t0}, s{sW}, 1280
    s_add_u32 s{t0}, s{t0}, {T_OS}
    v_add_u32 v{a0}, s{t0}, v{vL16}
    s_mul_i32 s{t2}, s{sTB}, 81920
    s_add_u32 s{t2}, s{t2}, {WS_O}
    s_lshr_b32 s{t0}, s{sW}, 1
    s_mul_i32 s{t0}, s{t0}, 20480
    s_and_b32 s{t1}, s{sW}, 1
    s_mul_i32 s{t1}, s{t1}, 1280
    s_add_u32 s{t0}, s{t0}, s{t1}
    s_mul_i32 s{t1}, s{sJ}, 2560
    s_add_u32 s{t0}, s{t0}, s{t1}
    s_add_u32 s{t0}, s{t0}, s{t2}
    s_waitcnt lgkmcnt(0)
    s_barrier''')
    stamp(27)
    E(f'''ds_read_b32 v{a2}, v{a3}
    ds_read_b128 v[0:3], v{a0}
    ds_read_b128 v[4:7], v{a0} offset:1024
    s_waitcnt lgkmcnt(2)
    v_readfirstlane_b32 s{t1}, v{a2}
    s_nop 0
    s_cmp_gt_u32 s{t1}, s{sMODE}
    s_cbranch_scc1 a_exact
    s_waitcnt lgkmcnt(1)
    buffer_store_dwordx4 v[0:3], v{vL16}, {sr(SWS,4)}, s{t0} offen sc1
    s_mov_b64 exec, 0xffff
    s_waitcnt lgkmcnt(0)
    buffer_store_dwordx4 v[4:7], v{vL16}, {sr(SWS,4)}, s{t0} offen offset:1024 sc1
    s_mov_b64 exec, -1''')
    stamp(28)
    srd(SD, pOUT, XBYTES)
    E(f'''s_lshl_b32 s{t5}, s{sTB}, 6
    s_lshl_b32 s{t1}, s{sNT}, 4
    s_add_u32 s{t5}, s{t5}, s{t1}
    v_and_b32 v{a0}, 15, v{vL}
    v_add_u32 v{a1}, s{t5}, v{a0}
    v_mul_u32_u24 v{vEo}, 1280, v{a1}
    v_lshrrev_b32 v{a2}, 4, v{vL}
    v_lshl_add_u32 v{vEo}, v{a2}, 3, v{vEo}
    s_mul_i32 s{sKR}, s{sJ}, 160
    s_mul_i32 s{t1}, s{sKH}, 96
    s_add_u32 s{sKR}, s{sKR}, s{t1}
    v_lshlrev_b32 v{a1}, 2, v{a1}
    s_mov_b32 s{t1}, {WS_G}
    buffer_load_dword v{vG}, v{a1}, {sr(SWS,4)}, s{t1} offen sc1''')
    for i in range(3): E(f'buffer_load_dwordx2 {r(XR+2*i,2)}, v{vEo}, {sr(SX,4)}, s{sKR} offen offset:{32*i}')
    E(f'''s_and_b32 s{sCB}, s{sKEY}, 0x7ff
    s_sub_u32 s{sCB}, 2047, s{sCB}
    s_sub_u32 s{sCB}, s{sCB}, s{t5}''')
    E(f'''s_mul_i32 s{t0}, s{sNT}, 20480
    s_add_u32 s{t2}, s{t2}, s{t0}
    s_lshl_b32 s{t0}, s{sKH}, 11
    s_add_u32 s{t2}, s{t2}, s{t0}''')
    for p in range(5):
        mod5(sXP+p, f's{sROT}', p)
        E(f's_lshl_b32 s{sXP+p}, s{sXP+p}, 12\ns_add_u32 s{sXP+p}, s{sXP+p}, s{t2}')
    E(f'''v_lshrrev_b32 v{a3}, 2, v{vL}
    v_mul_u32_u24 v{vTr}, 160, v{a3}
    v_and_b32 v{a3}, 3, v{vL}
    v_lshl_add_u32 v{vTr}, v{a3}, 3, v{vTr}
    s_mul_i32 s{t0}, s{sKH}, 10240
    s_add_u32 s{t0}, s{t0}, {T_W+40960}
    v_add_u32 v{vTr}, s{t0}, v{vTr}
    s_cmp_lt_u32 s{sCB}, 16
    s_cbranch_scc1 t_y
    s_waitcnt vmcnt(0)
    t_yret:''')
    stamp(29)
    def oload(p0):
        for p in range(p0, 5):
            for s in range(2): E(f'buffer_load_dwordx4 {r(XB+8*p+4*s,4)}, v{vL16}, {sr(SWS,4)}, s{sXP+p} offen offset:{1024*s} sc1')
    E('s_barrier')
    oload(0)
    for i in range(3):
        for h in range(2):
            E(f'v_lshlrev_b32 v{XF+4*i+2*h}, 16, v{XR+2*i+h}\nv_and_b32 v{XF+4*i+2*h+1}, 0xffff0000, v{XR+2*i+h}')
    E(f's_cmp_lt_u32 s{sCB}, 16\ns_cbranch_scc1 t_y2\nt_y2ret:\ns_mov_b32 s{t6}, 0')
    for p in range(5):
        if p == 3: E(f'v_add_u32 v{vTr}, {(1 << 32) - 40960}, v{vTr}')
        rd, mm = gemm_stage(p == 0, (p if p < 3 else p-3)*20480, XB+8*p)
        def mid():
            b = XB + 8*p
            E(f'''t_s{p}:
            s_waitcnt vmcnt({2*(4-p)})
            v_max3_u32 v{a0}, v{b}, v{b+1}, v{b+2}
            v_max3_u32 v{a1}, v{b+3}, v{b+4}, v{b+5}
            v_max3_u32 v{a0}, v{a0}, v{b+6}, v{b+7}
            v_max_u32 v{a0}, v{a0}, v{a1}
            v_cmp_eq_u32 vcc, -1, v{a0}
            s_nop 1
            s_cmp_eq_u64 vcc, 0
            s_cbranch_scc0 t_r{p}
            t_c{p}:''')
            stamp(30+p)
        gemm_run(rd, mm, mid)
    stamp(35)
    def fino(mt, i, n):
        a = ACC + 4*mt
        E(f's_waitcnt lgkmcnt({n-1-i})')
        for q in range(4): E(f'v_add_f32 v{a+q}, v{a+q}, v{RX+4*i+q}')
        for q in range(4): E(f'v_sub_f32 v{a+q}, v{a+q}, v{XF+4*i+q}')
        for q in range(4): E(f'v_fma_f32 v{a+q}, v{a+q}, v{vG}, v{XF+4*i+q}')
        E(f'''v_cvt_pk_bf16_f32 v{a}, v{a}, v{a+1}
        v_cvt_pk_bf16_f32 v{a+1}, v{a+2}, v{a+3}
        buffer_store_dwordx2 {r(a,2)}, v{vEo}, {sr(SD,4)}, s{sKR} offen offset:{32*i}''')
    exchange('o', T_GX, fino)
    stamp(36)
    if STAMPS: E('s_waitcnt vmcnt(0)')
    stamp(37); stamp(42, True); stamp_out()
    E('k_end:\ns_endpgm')
    for p in range(5):
        E(f'''t_r{p}:
        s_add_u32 s{t6}, s{t6}, 1
        s_cmp_gt_u32 s{t6}, {SPINMAX}
        s_cbranch_scc1 t_c{p}
        s_sleep 2''')
        oload(p)
        E(f's_branch t_s{p}')
    E(f'''t_y:
    v_min_u32 v{a1}, 53, v{vL}
    v_lshlrev_b32 v{a1}, 7, v{a1}
    s_mov_b32 s{t3}, {WS_Z+Z_C2}''')
    def iss(): E(f'buffer_load_dword v{a2}, v{a1}, {sr(SWS,4)}, s{t3} offen sc1')
    def chk(): E(f's_waitcnt vmcnt(0)\nv_cmp_ne_u32 vcc, 16, v{a2}\ns_nop 1\ns_cmp_eq_u64 vcc, 0')
    spin('t_c2', iss, chk, first_issued=False)
    E(f'''v_and_b32 v{a0}, 15, v{vL}
    v_mul_u32_u24 v{a1}, 2560, v{a0}
    v_lshrrev_b32 v{a2}, 4, v{vL}
    v_lshl_add_u32 v{a1}, v{a2}, 2, v{a1}
    s_lshr_b32 s{t3}, s{sKR}, 1
    s_add_u32 s{t3}, s{t3}, {WS_Z+Z_Y}''')
    for i in range(3):
        for c in range(4): E(f'buffer_load_dword v{YT+4*i+c}, v{a1}, {sr(SWS,4)}, s{t3} offen offset:{640*c+16*i} sc1')
    E(f'''s_branch t_yret
    t_y2:
    s_and_b32 s{t0}, s{sKEY}, 0xfffff800
    s_ashr_i32 s{t1}, s{t0}, 31
    s_not_b32 s{t1}, s{t1}
    s_or_b32 s{t1}, s{t1}, 0x80000000
    s_xor_b32 s{t0}, s{t0}, s{t1}
    v_mov_b32 v{a2}, s{t0}
    v_mul_f32 v{a2}, {fbits(-LOG2E)}, v{a2}
    v_exp_f32 v{a2}, v{a2}
    v_cmp_eq_u32 vcc, s{sCB}, v{a0}
    v_add_f32 v{a2}, 1.0, v{a2}
    v_rcp_f32 v{a2}, v{a2}
    s_waitcnt vmcnt(10)''')
    for sh in (8, 4, 2, 1):
        for i in range(12): E(f'v_add_f32_dpp v{YT+i}, v{YT+i}, v{YT+i} row_ror:{sh}')
    E('s_mov_b64 exec, vcc')
    for i in range(12): E(f'v_fmac_f32 v{XF+i}, v{YT+i}, v{a2}')
    E('s_mov_b64 exec, -1\ns_branch t_y2ret')
    E(f'''a_exact:
    s_mov_b32 s{sMODE}, 1
    s_cmp_eq_u32 s{sKH}, 0
    s_cselect_b32 s{sHOOK}, 1, 0x41
    s_waitcnt vmcnt(0) lgkmcnt(0)
    s_barrier''')
    kv_row0(); kv_rows('x_r', 1, 8)
    attn_addr()
    E(f'''v_mov_b32 v{a4}, 0xff800000
    v_mov_b32 v{a5}, 0xff800000
    s_mov_b32 s{t0}, 0
    s_waitcnt vmcnt(0)
    s_barrier
    x_mx:''')
    for t in range(4):
        E(f'''ds_read_b128 {r(KM[0],4)}, v{a3} offset:{t*512}
        ds_read_b64 {r(KX,2)}, v{a3} offset:{OFF_KT+8*(t>>1)}
        s_waitcnt lgkmcnt(0)
        v_mfma_f32_32x32x4_2b_bf16 {r(P[0],32)}, {r(KX,2)}, {r(QT,2)}, 0 cbsz:1 abid:{t&1}
        s_nop 15
        s_nop 1
        v_mfma_f32_32x32x16_bf16 {r(P[0],16)}, {r(KM[0],4)}, {r(QA,4)}, {r(P[0],16)}
        v_mfma_f32_32x32x16_bf16 {r(P[0]+16,16)}, {r(KM[0],4)}, {r(QB,4)}, {r(P[0]+16,16)}
        s_nop 11''')
        for i in range(0, 16, 2):
            E(f'v_max3_f32 v{a4}, v{a4}, v{i}, v{i+1}\nv_max3_f32 v{a5}, v{a5}, v{16+i}, v{17+i}')
    E(f'''v_add_u32 v{a3}, {BLK}, v{a3}
    s_add_u32 s{t0}, s{t0}, 1
    s_cmp_lt_u32 s{t0}, 16
    s_cbranch_scc1 x_mx
    v_mov_b32 v0, v{a4}
    v_mov_b32 v1, v{a5}
    s_nop 1
    v_permlane32_swap_b32 v0, v{a4}
    v_permlane32_swap_b32 v1, v{a5}
    v_max_f32 v0, v0, v{a4}
    v_max_f32 v1, v1, v{a5}''')
    for i in range(16): E(f'v_sub_f32 v{NEGM+i}, 0, v0\nv_sub_f32 v{NEGM+16+i}, 0, v1')
    first_reads()
    for i in range(32): E(f'v_mov_b32 v{OA+i}, 0')
    E(f'''s_mov_b32 s{sIT}, 0
    s_waitcnt lgkmcnt(0)
    s_barrier
    v_mov_b32 v{a0}, 0
    s_lshl_b32 s{t0}, s{sNT}, 2
    s_add_u32 s{t0}, s{t0}, {OUTBOX}
    v_mov_b32 v{a1}, s{t0}
    ds_write_b32 v{a1}, v{a0}
    v_mfma_f32_32x32x4_2b_bf16 {r(P[0],32)}, {r(KX,2)}, {r(QT,2)}, {r(NEGM,32)} cbsz:1 abid:0
    s_nop 15
    s_nop 1
    v_mfma_f32_32x32x16_bf16 {r(P[0],16)}, {r(KM[0],4)}, {r(QA,4)}, {r(P[0],16)}
    v_mfma_f32_32x32x16_bf16 {r(P[0]+16,16)}, {r(KM[0],4)}, {r(QB,4)}, {r(P[0]+16,16)}
    s_nop 11
    v_exp_f32 v0, v0
    v_exp_f32 v1, v1
    s_branch a_in''')
    E(f'''a_hook:
    s_cmp_eq_u32 s{sIT}, 0
    s_cbranch_scc0 h_1
    s_waitcnt vmcnt(0) lgkmcnt(0)
    s_barrier
    s_cmp_eq_u32 s{sMODE}, 0
    s_cbranch_scc0 a_hookret''')
    E(f'''s_cmp_eq_u32 s{sKH}, 0
    s_cbranch_scc1 h_0A
    s_setprio 2
    v_mov_b32 v{a0}, 0
    s_lshl_b32 s{t0}, s{sNT}, 2
    s_add_u32 s{t0}, s{t0}, {OUTBOX}
    v_mov_b32 v{a1}, s{t0}
    ds_write_b32 v{a1}, v{a0}
    s_branch a_hookret
    h_0A:
    s_setprio 1''')
    kv_rows('h_r', 2, 5, True)
    E('s_waitcnt vmcnt(12)\ns_barrier')
    kv_rows('h_r2', 5, 8, True)
    srd(SF, pWD, FBYTES)
    E(f'''s_mul_i32 s{t0}, s2, {8*1280}
    s_mul_i32 s{t1}, s{sNT}, 320
    s_add_u32 s{t0}, s{t0}, s{t1}
    s_add_u32 s{t1}, s{t0}, 5120
    v_lshlrev_b32 v{a7}, 3, v{vL}''')
    for i in range(8):
        E(f'buffer_load_dwordx2 {r(FF+2*i,2)}, v{a7}, {sr(SF,4)}, s{t0+(i>>2)} offen offset:{(i&3)*1280}')
    E(f'''s_waitcnt vmcnt(8)
    s_barrier
    s_cmp_lt_u32 s2, 216
    s_cbranch_scc1 a_hookret
    s_mov_b32 s{sHOOK}, 0
    s_branch a_hookret
    h_1:
    s_cmp_eq_u32 s{sKH}, 0
    s_cbranch_scc1 h_A2
    s_cmp_eq_u32 s{sIT}, 1
    s_cbranch_scc0 h_B2
    s_waitcnt lgkmcnt(0)
    s_barrier
    s_branch a_hookret
    h_B2:
    s_cmp_eq_u32 s{sIT}, 2
    s_cbranch_scc0 h_B4
    s_barrier
    s_bitcmp1_b32 s2, 7
    s_cselect_b32 s{pWG}, s{pWU}, s{pWG}
    s_cselect_b32 s{pWG+1}, s{pWU+1}, s{pWG+1}''')
    srd(SF, pWG, FBYTES)
    E(f'''s_lshl_b32 s{t0}, s2, 2
    s_add_u32 s{t0}, s{t0}, s{sNT}
    s_and_b32 s{sKR}, s{t0}, 31
    s_bfe_u32 s{sCB}, s{t0}, 0x40005
    s_and_b32 s{t0}, s{sKEY}, 0x7ff
    s_sub_u32 s{t0}, 2047, s{t0}
    s_mul_i32 s{t0}, s{t0}, 1280
    s_mul_i32 s{t1}, s{sKR}, 40
    s_add_u32 s{t0}, s{t0}, s{t1}
    s_add_u32 s50, s{pX}, s{t0}
    s_addc_u32 s51, s{pX+1}, 0
    s_load_dwordx8 {sr(sXP,8)}, s[50:51], 0
    s_load_dwordx2 {sr(sXP+8,2)}, s[50:51], 32
    s_mul_i32 s{t0}, s{sKR}, {20*3456}
    s_mul_i32 s{t1}, s{sCB}, 216
    s_add_u32 s{t0}, s{t0}, s{t1}
    v_lshlrev_b32 v{a7}, 2, v{vL}''')
    for i in range(10):
        E(f'''buffer_load_dword v{FF+2*i}, v{a7}, {sr(SF,4)}, s{t0} offen
        buffer_load_dword v{FF+2*i+1}, v{a7}, {sr(SF,4)}, s{t0} offen offset:3456
        s_add_u32 s{t0}, s{t0}, 6912''')
    E(f'''s_branch a_hookret
    h_B4:
    s_cmp_eq_u32 s{sIT}, 4
    s_cbranch_scc0 h_B5
    s_mov_b32 s{t0}, 0x05040100
    s_mov_b32 s{t1}, 0x07060302
    v_mov_b32 v{a1}, 0
    v_mov_b32 v{a2}, 0
    v_lshlrev_b32 v{a7}, 2, v{vL}
    s_waitcnt vmcnt(0)''')
    for i in range(10):
        E(f'''v_perm_b32 v{a4}, v{FF+2*i+1}, v{FF+2*i}, s{t0}
        v_perm_b32 v{a5}, v{FF+2*i+1}, v{FF+2*i}, s{t1}
        v_dot2c_f32_bf16 v{a1}, s{sXP+i}, v{a4}
        v_dot2c_f32_bf16 v{a2}, s{sXP+i}, v{a5}''')
    def arrive(off):
        E(f'''s_lshr_b32 s{t0}, s2, 2
        s_lshl_b32 s{t0}, s{t0}, 7
        s_add_u32 s{t0}, s{t0}, {WS_Z+off}
        v_mov_b32 v{a1}, 1
        v_mov_b32 v{a2}, 0
        s_waitcnt vmcnt(0)
        s_mov_b64 exec, 1
        buffer_atomic_add v{a1}, v{a2}, {sr(SWS,4)}, s{t0} offen
        s_mov_b64 exec, -1
        s_branch a_hookret''')
    E(f'''s_lshr_b32 s{t0}, s2, 7
    s_mul_i32 s{t0}, s{t0}, 6912
    s_mul_i32 s{t1}, s{sCB}, 216
    s_add_u32 s{t0}, s{t0}, s{t1}
    s_add_u32 s{t0}, s{t0}, {WS_Z+Z_H}
    s_mov_b32 exec_hi, 0x3fffff
    buffer_atomic_add_f32 v{a1}, v{a7}, {sr(SWS,4)}, s{t0} offen
    buffer_atomic_add_f32 v{a2}, v{a7}, {sr(SWS,4)}, s{t0} offen offset:3456
    s_mov_b32 exec_hi, -1
    s_branch a_hookret
    h_B5:
    s_cmp_eq_u32 s{sIT}, 5
    s_cbranch_scc0 h_B6''')
    arrive(Z_C1)
    E(f'''h_B6:
    s_setprio 0
    v_mov_b32 v{a0}, 1
    s_lshl_b32 s{t0}, s{sNT}, 2
    s_add_u32 s{t0}, s{t0}, {OUTBOX}
    v_mov_b32 v{a1}, s{t0}
    s_waitcnt lgkmcnt(0)
    ds_write_b32 v{a1}, v{a0}
    v_mov_b32 v{a1}, {OUTBOX}''')
    def iss(): E(f'ds_read_b128 {r(PL,4)}, v{a1}')
    def chk(): E(f'''s_waitcnt lgkmcnt(0)
        v_and_b32 v{PL}, v{PL}, v{PL+1}
        v_and_b32 v{PL+2}, v{PL+2}, v{PL+3}
        v_and_b32 v{PL}, v{PL}, v{PL+2}
        s_nop 0
        v_readfirstlane_b32 s{t0}, v{PL}
        s_nop 0
        s_cmp_eq_u32 s{t0}, 1''')
    spin('h_ob', iss, chk, first_issued=False, sleep=1)
    wo_issue('h_w', 4, sNT, 0, 3)
    E('s_branch a_hookret')
    E(f'''h_A2:
    s_mov_b32 s{t3}, {WS_Z+Z_C1}
    s_cmp_eq_u32 s{sIT}, 2
    s_cbranch_scc0 h_A3
    v_lshlrev_b32 v{a1}, 7, v{vL}''')
    def iss(): E(f'buffer_load_dword v{a2}, v{a1}, {sr(SWS,4)}, s{t3} offen sc1')
    def chk(): E(f's_waitcnt vmcnt(0)\nv_cmp_ne_u32 vcc, 16, v{a2}\ns_nop 1\ns_cmp_eq_u64 vcc, 0')
    iss()
    E(f'''s_branch a_hookret
    h_A3:
    s_cmp_eq_u32 s{sIT}, 3
    s_cbranch_scc0 h_A4''')
    spin('h_c1', iss, chk)
    E(f'''s_lshl_b32 s{t0}, s2, 4
    s_add_u32 s{t0}, s{t0}, {WS_Z+Z_H}
    s_add_u32 s{t1}, s{t0}, 6912
    v_and_b32 v{a1}, 3, v{vL}
    v_lshlrev_b32 v{a1}, 2, v{a1}
    buffer_load_dword v{FF+16}, v{a1}, {sr(SWS,4)}, s{t0} offen sc1
    buffer_load_dword v{FF+17}, v{a1}, {sr(SWS,4)}, s{t0} offen offset:3456 sc1
    buffer_load_dword v{FF+18}, v{a1}, {sr(SWS,4)}, s{t1} offen sc1
    buffer_load_dword v{FF+19}, v{a1}, {sr(SWS,4)}, s{t1} offen offset:3456 sc1
    s_branch a_hookret
    h_A4:
    s_cmp_eq_u32 s{sIT}, 4
    s_cbranch_scc0 h_A5
    s_waitcnt vmcnt(0)
    v_mul_f32 v{a1}, {fbits(-LOG2E)}, v{FF+16}
    v_mul_f32 v{a2}, {fbits(-LOG2E)}, v{FF+17}
    v_exp_f32 v{a1}, v{a1}
    v_exp_f32 v{a2}, v{a2}
    v_mul_f32 v{FF+16}, v{FF+16}, v{FF+18}
    v_add_f32 v{a1}, 1.0, v{a1}
    v_add_f32 v{a2}, 1.0, v{a2}
    v_rcp_f32 v{a1}, v{a1}
    v_rcp_f32 v{a2}, v{a2}
    v_mul_f32 v{FF+17}, v{FF+17}, v{FF+19}
    v_mul_f32 v{a1}, v{a1}, v{FF+16}
    v_mul_f32 v{a2}, v{a2}, v{FF+17}
    v_cvt_pk_bf16_f32 v{a1}, v{a1}, v{a2}
    s_mov_b32 s{t0}, 0x05040100
    s_mov_b32 s{t1}, 0x07060302''')
    for q in range(4): E(f'v_readlane_b32 s{sXP+q}, v{a1}, {q}')
    for c in range(4): E(f'v_mov_b32 v{FF+16+c}, 0')
    for q in range(4):
        a, b = FF+4*q, FF+4*q+2
        E(f'''v_perm_b32 v{a1}, v{b}, v{a}, s{t0}
        v_perm_b32 v{a2}, v{b}, v{a}, s{t1}
        v_perm_b32 v{a4}, v{b+1}, v{a+1}, s{t0}
        v_perm_b32 v{a5}, v{b+1}, v{a+1}, s{t1}
        v_dot2c_f32_bf16 v{FF+16}, s{sXP+q}, v{a1}
        v_dot2c_f32_bf16 v{FF+17}, s{sXP+q}, v{a2}
        v_dot2c_f32_bf16 v{FF+18}, s{sXP+q}, v{a4}
        v_dot2c_f32_bf16 v{FF+19}, s{sXP+q}, v{a5}''')
    E(f'''s_and_b32 s{t0}, s2, 15
    s_mul_i32 s{t0}, s{t0}, 2560
    s_mul_i32 s{t1}, s{sNT}, 160
    s_add_u32 s{t0}, s{t0}, s{t1}
    s_add_u32 s{t0}, s{t0}, {WS_Z+Z_Y}
    v_lshlrev_b32 v{a1}, 2, v{vL}
    s_mov_b32 exec_hi, 0xff''')
    for c in range(4): E(f'buffer_atomic_add_f32 v{FF+16+c}, v{a1}, {sr(SWS,4)}, s{t0} offen offset:{640*c}')
    E('s_mov_b32 exec_hi, -1\ns_branch a_hookret\nh_A5:')
    arrive(Z_C2)

def main(path):
    ref = open(f'cdna_kernels/{NAME}.s.ref').read().splitlines()
    head = [l for l in ref if l.startswith(';') and '@launch' not in l]
    head += ['; @launch grid=(256,1,1) block=(512,1,1) lds=163840']
    kernel()
    txt = '\n'.join(head) + '\n.amdgcn_target "amdgcn-amd-amdhsa--gfx950"\n.text\n' + '\n'.join(L) + f'''
.section .rodata,"a"
.p2align 6
.amdhsa_kernel {K}
  .amdhsa_next_free_vgpr 256
  .amdhsa_next_free_sgpr 102
  .amdhsa_accum_offset 256
  .amdhsa_group_segment_fixed_size 0
  .amdhsa_kernarg_size 112
  .amdhsa_user_sgpr_count 2
  .amdhsa_user_sgpr_kernarg_segment_ptr 1
  .amdhsa_system_sgpr_workgroup_id_x 1
  .amdhsa_float_denorm_mode_32 3
.end_amdhsa_kernel
'''
    open(path, 'w').write(txt)
if __name__ == '__main__':
    main(sys.argv[1] if len(sys.argv) > 1 else 'f1.s')
```

```python
import sys, math, struct, os
NAME = 'gated_mix__grouped_kv_mqa__moe_arch_mod__prompt'
K = NAME + '_kernel'
L = []
def E(s=''):
    for x in s.split('\n'):
        x = x.strip()
        if x: L.append(x if x.endswith(':') or x.startswith('.') else '    ' + x)
def r(a, n): return f'v[{a}:{a+n-1}]'
def sr(a, n): return f's[{a}:{a+n-1}]'
def fbits(x): return '0x%08x' % struct.unpack('<I', struct.pack('<f', x))[0]
STAMPS = int(os.environ.get('STAMPS', '0'))
OPT = os.environ.get('OPT', '')

WS_KV = 0; WS_FLAG = 0x30000; WS_G = 0x34000; WS_Z = 0x40000
Z_H = 0; Z_Y = 16384; Z_C1 = 57344; Z_C2 = 65536; Z_SIZE = 81920
WS_O = 0x80000
WS_SIZE = 0x800000
XBYTES = 2048*640*2; WBYTES = 640*640*2; FBYTES = 640*1728*2
QSCALE = math.log2(math.e)/math.sqrt(20.0)
LOG2E = math.log2(math.e)
XSHIFT = float(os.environ.get('XS', '88'))
SPINMAX = 100000
pX, pWQ, pWK, pWV, pWO, pWR, pWG, pWU, pWD, pGW, pOUT, pDBG, pWS = 64, 66, 68, 70, 72, 76, 78, 80, 82, 84, 86, 88, 90
sKH, sW, sTB, sJ, sNT = 3, 4, 5, 6, 7
SX, SW, SE, SWS, SF, SD = 8, 12, 16, 20, 24, 28
sROT, sNP, sKEY, sIT, sHOOK, sMODE = 32, 33, 34, 35, 36, 37
sMASK = 38
sXP = 52
t0, t1, t2, t3, t4, t5, t6, t7 = 40, 41, 42, 43, 44, 45, 46, 47
sKR, sCB = 48, 49
vL = 255
P = [0, 32]; OA, OB = 64, 80; NEGM = 96
QA, QB, QT = 128, 132, 136
KM = [140, 144]; KX, KY = 148, 150
VV = [152, 160]
IDX, ADDR, vNM = 168, 169, 170
FF = 172
XB = 0; ACC = 40; AF = [96, 172]; RX = 116
a0, a1, a2, a3, a4, a5, a6, a7 = 200, 201, 202, 203, 204, 205, 206, 207
vWo, vTr, vXa, vXb, vL16, vW40 = 208, 209, 210, 211, 212, 213
PL = 216
BLK, HALF, SETB = 10240, 5120, 81920
OFF_KT = 4608
L_X = 0; L_WKV = 81920; L_PART = 107520; L_CNT = L_PART + 2048 + 512
L_W1 = 122880; L_W2 = 20480; L_QX = L_W1; L_KEY = 102400
F_B, F_A, F_B6, F_A5 = 0, 16, 32, 48
T_OX = 256; T_BAD = 128; T_W0 = 81920; T_W3 = 30720; T_OS = 143360; T_Y = 71680
vEo, vEl, XR, vG = 220, 223, 226, 232
sROT2 = 62
STSET = os.environ.get('ST', '')
def stamp(i, real=False):
    if not STAMPS: return
    if STSET and not real and i > 1 and str(i) not in STSET.split(','): return
    E(f'''{'s_memrealtime' if real else 's_memtime'} s[96:97]
    s_waitcnt lgkmcnt(0)
    v_writelane_b32 v254, s96, {i}''')
def stamp_out():
    if not STAMPS: return
    E(f'''s_lshl_b32 s96, s2, 3
    s_add_u32 s96, s96, s{sW}
    s_mul_i32 s96, s96, 256
    s_add_u32 s96, s96, 0x700000
    v_lshlrev_b32 v253, 2, v{vL}
    buffer_store_dword v254, v253, {sr(SWS,4)}, s96 offen''')

def srd(d, p, nbytes):
    E(f's_mov_b32 s{d}, s{p}\ns_and_b32 s{d+1}, s{p+1}, 0xffff\ns_mov_b32 s{d+2}, {nbytes}\ns_mov_b32 s{d+3}, 0x20000')
def mod5(d, a, b):
    E(f's_add_u32 s{d}, {a}, {b}\ns_cmp_ge_u32 s{d}, 5\ns_cselect_b32 s{t7}, 5, 0\ns_sub_u32 s{d}, s{d}, s{t7}')
def dma(v, S, soff, off=0, mods=''):
    E(f'buffer_load_dwordx4 v{v}, {sr(S,4)}, {soff} offen {"offset:%d " % off if off else ""}{mods} lds')
def smf(o, a, b): return f'v_smfmac_f32_32x32x32_bf16 {r(o,16)}, {r(a,4)}, {r(b,8)}, v{IDX}'
def off_v(t, i): return 2048 + (2*t+i)*320
def wave_max_u32(v):
    for sh in ('row_shr:1', 'row_shr:2', 'row_shr:4', 'row_shr:8', 'row_bcast:15 row_mask:0xa', 'row_bcast:31 row_mask:0xc'):
        E(f's_nop 1\nv_max_u32_dpp v{v}, v{v}, v{v} {sh}')

def w_issue(pos, ldsbase):
    mod5(t0, f's{sROT}', pos)
    E(f's_mul_i32 s{t0}, s{t0}, 163840\ns_lshl_b32 s{t1}, s{sW}, 10')
    for i in range(4):
        E(f's_add_u32 m0, s{t1}, {ldsbase + i*5120}')
        if i: E(f's_add_u32 s{t0}, s{t0}, 40960')
        else: E('s_nop 0')
        dma(vWo, SW, f's{t0}')

def gemm_stage(first, base, xb):
    def rd(st, mt):
        a = AF[st] + 4*mt
        E(f'ds_read_b64_tr_b16 {r(a,2)}, v{vTr} offset:{base + st*5120 + mt*32}')
        E(f'ds_read_b64_tr_b16 {r(a+2,2)}, v{vTr} offset:{base + st*5120 + 2560 + mt*32}')
    def mm(st, mt):
        c = '0' if (first and st == 0) else r(ACC+4*mt, 4)
        E(f'v_mfma_f32_16x16x32_bf16 {r(ACC+4*mt,4)}, {r(AF[st]+4*mt,4)}, {r(xb+4*st,4)}, {c}')
    return rd, mm
def gemm_run(rd, mm, mid=None):
    for mt in range(5): rd(0, mt)
    if mid: mid()
    for mt in range(5):
        rd(1, mt); E('s_waitcnt lgkmcnt(10)'); mm(0, mt)
    for mt in range(5):
        E(f's_waitcnt lgkmcnt({2*(4-mt)})'); mm(1, mt)

def kv_row(slot_expr_lds, y_sgpr):
    E(f'''s_mul_i32 s{t0}, s{y_sgpr}, 20480
    s_mov_b32 m0, {slot_expr_lds}
    s_add_u32 s{t0}, s{t0}, s{t6}''')
    dma(vL16, SWS, f's{t0}', 0, 'sc1'); dma(vL16, SWS, f's{t0}', 1024, 'sc1')
    E('s_mov_b32 exec_hi, 0'); dma(vL16, SWS, f's{t0}', 2048, 'sc1'); E('s_mov_b32 exec_hi, -1')
def kv_rows(tag, i0, i1, setfix=None):
    if setfix is None: E(f's_mul_i32 s{t2}, s{sKH}, {SETB}\ns_mul_i32 s{t6}, s{sW}, 2560')
    else: E(f's_mov_b32 s{t2}, {setfix*SETB}\ns_mul_i32 s{t6}, s{sNT}, 2560\ns_add_u32 s{t6}, s{t6}, {setfix*BLK}')
    E(f'''s_mul_i32 s{t3}, s{sNT}, 2560
    s_add_u32 s{t2}, s{t2}, s{t3}
    s_add_u32 s{t2}, s{t2}, {i0*BLK}
    s_add_u32 s{t3}, s{sJ}, {i0-1}
    s_add_u32 s{t4}, s{t2}, {(i1-i0)*BLK}
    {tag}:
    s_cmp_ge_u32 s{t3}, 7
    s_cselect_b32 s{t5}, 7, 0
    s_sub_u32 s{t3}, s{t3}, s{t5}
    s_add_u32 s{t3}, s{t3}, 1
    s_add_u32 s{t5}, s2, s{t3}
    s_and_b32 s{t5}, s{t5}, 7''')
    kv_row(f's{t2}', t5)
    if i1 - i0 > 1:
        E(f'''s_add_u32 s{t2}, s{t2}, {BLK}
        s_cmp_lt_u32 s{t2}, s{t4}
        s_cbranch_scc1 {tag}''')
def kv_row0():
    E(f'''s_mul_i32 s{t2}, s{sKH}, {SETB}
    s_mul_i32 s{t3}, s{sNT}, 2560
    s_add_u32 s{t2}, s{t2}, s{t3}
    s_mul_i32 s{t6}, s{sW}, 2560
    s_and_b32 s{t5}, s2, 7''')
    kv_row(f's{t2}', t5)

def wo_issue(tag, p0, p1, lds, all8=False):
    E(f'''s_mul_i32 s{t2}, s{sW if all8 else sNT}, 640
    s_add_u32 s{t2}, s{t2}, {lds}
    s_mul_i32 s{t5}, s{sNT}, 10240''')
    if all8: E(f's_mul_i32 s{t3}, s{sKH}, 5120\ns_add_u32 s{t5}, s{t5}, s{t3}')
    E(f's_mov_b32 s{t3}, {p0}\ns_mov_b32 exec_hi, 0xff\n{tag}:')
    mod5(t4, f's{sROT2}', f's{t3}')
    E(f's_mul_i32 s{t4}, s{t4}, 163840\ns_add_u32 s{t4}, s{t4}, s{t5}')
    for ks in range(4):
        E(f's_add_u32 m0, s{t2}, {ks*5120}\ns_add_u32 s{t6}, s{t4}, {ks*40960}')
        dma(vW40, SW, f's{t6}')
        if not all8:
            E(f's_add_u32 m0, s{t2}, {ks*5120+2560}\ns_add_u32 s{t6}, s{t4}, {ks*40960+5120}')
            dma(vW40, SW, f's{t6}')
    if p1 - p0 > 1:
        E(f'''s_add_u32 s{t2}, s{t2}, 20480
        s_add_u32 s{t3}, s{t3}, 1
        s_cmp_lt_u32 s{t3}, {p1}
        s_cbranch_scc1 {tag}''')
    E('s_mov_b32 exec_hi, -1')

def x_private(tag):
    E(f'''s_cmp_eq_u32 s{sNT}, s{sNP}
    s_cbranch_scc1 {tag}_e
    s_mul_i32 s{t5}, s{sNT}, 20480
    s_mul_i32 s{t2}, s{sTB}, 81920
    s_add_u32 s{t2}, s{t2}, s{t5}
    s_lshl_b32 s{t0}, s{sKH}, 7
    s_add_u32 s{t2}, s{t2}, s{t0}
    s_lshl_b32 s{t0}, s{sKH}, 10
    s_add_u32 s{t5}, s{t5}, s{t0}
    s_mov_b32 s{t6}, 0
    {tag}:''')
    mod5(t0, f's{sROT}', f's{t6}')
    E(f'''s_lshl_b32 s{t0}, s{t0}, 8
    s_add_u32 s{t0}, s{t0}, s{t2}
    s_mov_b32 m0, s{t5}
    s_add_u32 s{t1}, s{t0}, 10240''')
    dma(vXa, SX, f's{t0}')
    E(f's_add_u32 m0, s{t5}, 10240\ns_add_u32 s{t6}, s{t6}, 1'); dma(vXb, SX, f's{t1}')
    E(f'''s_add_u32 s{t5}, s{t5}, 2048
    s_cmp_lt_u32 s{t6}, 5
    s_cbranch_scc1 {tag}
    {tag}_e:''')

def flag_set(off):
    E(f'''s_lshl_b32 s{t0}, s{sNT}, 2
    v_mov_b32 v{a0}, -1
    v_mov_b32 v{a1}, s{t0}
    ds_write_b32 v{a1}, v{a0} offset:{off}''')
def flag_wait(tag, off):
    E(f'v_mov_b32 v{a1}, 0')
    def iss(): E(f'ds_read_b128 {r(PL,4)}, v{a1} offset:{off}')
    def chk(): E(f'''s_waitcnt lgkmcnt(0)
        v_min3_u32 v{PL}, v{PL}, v{PL+1}, v{PL+2}
        v_min_u32 v{PL}, v{PL}, v{PL+3}
        s_nop 0
        v_readfirstlane_b32 s{t0}, v{PL}
        s_nop 0
        s_cmp_eq_u32 s{t0}, -1''')
    spin(tag, iss, chk, first_issued=False, sleep=1)
def xg_loads():
    E(f's_mov_b32 s{t0}, {WS_G}\ns_mov_b32 s{t1}, {(1 << 32)//1280 + 1}')
    for i in range(3):
        E(f'''v_mul_hi_u32 v{a0}, v{vEo+i}, s{t1}
        buffer_load_dwordx2 {r(XR+2*i,2)}, v{vEo+i}, {sr(SX,4)}, 0 offen
        v_lshlrev_b32 v{a0}, 2, v{a0}
        buffer_load_dword v{vG+i}, v{a0}, {sr(SWS,4)}, s{t0} offen sc1''')

def spin(tag, issue, check, first_issued=True, sleep=2):
    E(f's_mov_b32 s{t6}, 0')
    if not first_issued: issue()
    E(f'{tag}_sp:')
    check()
    E(f'''s_cbranch_scc1 {tag}_ok
    s_add_u32 s{t6}, s{t6}, 1
    s_cmp_gt_u32 s{t6}, {SPINMAX}
    s_cbranch_scc1 {tag}_ok
    s_sleep {sleep}''')
    issue()
    E(f's_branch {tag}_sp\n{tag}_ok:')

def period(t):
    cur, nxt = P[t & 1], P[(t+1) & 1]
    vp, vc = VV[(t+1) & 1], VV[t & 1]
    km = KM[(t+1) & 1]
    kt, abid = [(KX, 1), (KY, 0), (KY, 1), (KX, 0)][t]
    e = lambda a, b: [E(f'v_exp_f32 v{cur+i}, v{cur+i}') for i in range(a, b)]
    e(0, 2)
    E(smf(OB, vp+4, nxt+24))
    if t == 0: E('a_in:')
    if t == 2:
        E(f's_bitcmp1_b32 s{sHOOK}, s{sIT}\ns_cbranch_scc1 a_hook\na_hookret:')
    tv, tk = t+1, t+2
    E(f'''s_waitcnt lgkmcnt(0)
    s_mov_b64 exec, {sr(sMASK,2)}
    ds_read_b128 {r(vp,4)}, v{ADDR} offset:{(tv>>2)*BLK+off_v(tv&3,0)}
    ds_read_b128 {r(vp+4,4)}, v{ADDR} offset:{(tv>>2)*BLK+off_v(tv&3,1)}
    s_mov_b64 exec, -1
    ds_read_b128 {r(KM[tk&1],4)}, v{ADDR} offset:{(tk>>2)*BLK+(tk&3)*512}''')
    if t == 0: E(f'ds_read_b64 {r(KY,2)}, v{ADDR} offset:{OFF_KT+8}')
    if t == 2: E(f'ds_read_b64 {r(KX,2)}, v{ADDR} offset:{BLK+OFF_KT}')
    e(2, 6)
    E(f'v_mfma_f32_32x32x4_2b_bf16 {r(nxt,32)}, {r(kt,2)}, {r(QT,2)}, {r(NEGM,32)} cbsz:1 abid:{abid}')
    e(6, 14)
    E(smf(OA, vc, cur))
    e(14, 18)
    E(smf(OA, vc+4, cur+8))
    e(18, 22)
    E(f'v_mfma_f32_32x32x16_bf16 {r(nxt,16)}, {r(km,4)}, {r(QA,4)}, {r(nxt,16)}')
    e(22, 26)
    E(smf(OB, vc, cur+16))
    e(26, 29)
    E(f'v_mfma_f32_32x32x16_bf16 {r(nxt+16,16)}, {r(km,4)}, {r(QB,4)}, {r(nxt+16,16)}')
    e(29, 32)

def first_reads():
    E(f'''ds_read_b64 {r(KX,2)}, v{ADDR} offset:{OFF_KT}
    ds_read_b128 {r(KM[0],4)}, v{ADDR}
    s_mov_b64 exec, {sr(sMASK,2)}
    ds_read_b128 {r(VV[0],4)}, v{ADDR} offset:{off_v(0,0)}
    ds_read_b128 {r(VV[0]+4,4)}, v{ADDR} offset:{off_v(0,1)}
    s_mov_b64 exec, -1
    ds_read_b128 {r(KM[1],4)}, v{ADDR} offset:512''')
def attn_addr():
    E(f'''v_and_b32 v{a1}, 31, v{vL}
    v_lshrrev_b32 v{a2}, 5, v{vL}
    v_mul_u32_u24 v{a2}, {HALF}, v{a2}
    v_lshl_add_u32 v{a3}, v{a1}, 4, v{a2}
    s_mul_i32 s{t0}, s{sKH}, {SETB}
    v_add_u32 v{ADDR}, s{t0}, v{a3}''')

def idle_setup():
    E(f'''v_bfe_u32 v{vXa}, v{vL}, 3, 1
    v_mul_u32_u24 v{vXa}, 10240, v{vXa}
    v_and_b32 v{a1}, 7, v{vL}
    v_lshl_add_u32 v{vXa}, v{a1}, 7, v{vXa}
    v_bfe_u32 v{a1}, v{vL}, 1, 3
    v_lshrrev_b32 v{a2}, 4, v{vL}
    v_xor_b32 v{a1}, v{a1}, v{a2}
    v_lshl_add_u32 v{vXa}, v{a1}, 4, v{vXa}
    s_mul_i32 s{t0}, s{sNT}, 20480
    s_lshl_b32 s{t1}, s{sKH}, 10
    s_add_u32 s{t0}, s{t0}, s{t1}
    v_add_u32 v{vXa}, s{t0}, v{vXa}
    v_xor_b32 v{vXb}, 64, v{vXa}
    v_lshrrev_b32 v{a2}, 2, v{vL}
    v_mul_u32_u24 v{vTr}, 160, v{a2}
    v_and_b32 v{a2}, 3, v{vL}
    v_lshl_add_u32 v{vTr}, v{a2}, 3, v{vTr}
    s_mul_i32 s{t0}, s{sKH}, 10240
    s_add_u32 s{t0}, s{t0}, {L_W1}
    v_add_u32 v{vTr}, s{t0}, v{vTr}''')
    attn_addr()
    E(f'''v_mov_b32 v{a6}, 0
    v_mov_b32 v{IDX}, 0xdddd
    v_cmp_eq_u32 vcc, 20, v{a1}
    v_mov_b32 v{a2}, 0x3f803f80
    s_mov_b32 s{sMASK}, 0xfffff
    s_mov_b32 s{sMASK+1}, 0xfffff''')
    for i in range(16): E(f'v_cndmask_b32 v{VV[0]+i}, 0, v{a2}, vcc')
    for i in range(0, 32, 2): E(f'v_mov_b64 {r(OA+i,2)}, 0')
    E(f'''v_mul_u32_u24 v{a1}, 6554, v{vL}
    v_lshrrev_b32 v{a1}, 16, v{a1}
    v_mul_u32_u24 v{vW40}, 1120, v{a1}
    s_mul_i32 s{t0}, s{sJ}, 160
    v_add3_u32 v{vW40}, v{vW40}, v{vL16}, s{t0}
    s_add_u32 s{sROT2}, s{sROT}, s{sJ}
    s_mul_i32 s{t1}, s{sROT2}, 52
    s_lshr_b32 s{t1}, s{t1}, 8
    s_mul_i32 s{t1}, s{t1}, 5
    s_sub_u32 s{sROT2}, s{sROT2}, s{t1}
    s_lshl_b32 s{t1}, s{sTB}, 6
    s_lshl_b32 s{t2}, s{sNT}, 4
    s_add_u32 s{t1}, s{t1}, s{t2}
    s_mul_i32 s{t1}, s{t1}, 1280
    s_add_u32 s{t0}, s{t0}, s{t1}
    s_mul_i32 s{t1}, s{sKH}, 192''')
    for i in range(3):
        E(f'''v_add_u32 v{a1}, s{t1}, v{vL}
        v_mul_u32_u24 v{a2}, 3277, v{a1}
        v_lshrrev_b32 v{a2}, 16, v{a2}
        v_mul_u32_u24 v{a3}, 1120, v{a2}
        v_lshl_add_u32 v{a3}, v{a1}, 3, v{a3}
        v_add_u32 v{vEo+i}, s{t0}, v{a3}
        v_mul_u32_u24 v{a3}, 272, v{a1}
        v_mul_u32_u24 v{a2}, 5424, v{a2}
        v_sub_u32 v{vEl+i}, v{a3}, v{a2}
        s_add_u32 s{t1}, s{t1}, 64''')

def kernel():
    E(f'.globl {K}\n.p2align 8\n.type {K},@function\n{K}:')
    E(f'''s_cmp_ge_u32 s2, 256
    s_cbranch_scc1 k_end
    s_load_dwordx16 s[64:79], s[0:1], 0
    s_load_dwordx8 s[80:87], s[0:1], 64
    s_load_dwordx4 s[88:91], s[0:1], 96''')
    if STAMPS: E('s_waitcnt lgkmcnt(0)')
    stamp(0, True); stamp(1)
    E(f'''v_lshrrev_b32 v1, 6, v0
    v_and_b32 v{vL}, 63, v0
    v_readfirstlane_b32 s{sW}, v1
    s_and_b32 s{sTB}, s2, 7
    s_lshl_b32 s{sTB}, s{sTB}, 2
    s_lshr_b32 s{sROT}, s2, 6
    s_or_b32 s{sTB}, s{sTB}, s{sROT}
    s_bfe_u32 s{sJ}, s2, 0x30003
    s_lshr_b32 s{sNP}, s{sJ}, 1
    s_and_b32 s{sNT}, s{sW}, 3
    s_lshr_b32 s{sKH}, s{sW}, 2
    v_lshlrev_b32 v{vL16}, 4, v{vL}
    v_mov_b32 v{a0}, {L_CNT}
    v_mov_b32 v{a1}, 0
    ds_write_b32 v{a0}, v{a1}''')
    E(f'''v_lshrrev_b32 v{a0}, 3, v{vL}
    v_mul_u32_u24 v{vXa}, 1280, v{a0}
    v_lshrrev_b32 v{a0}, 4, v{vL}
    v_xor_b32 v{a0}, v{a0}, v{vL}
    v_and_b32 v{a0}, 7, v{a0}
    v_lshl_add_u32 v{vXa}, v{a0}, 4, v{vXa}
    v_xor_b32 v{vXb}, 64, v{vXa}
    s_mul_i32 s{t2}, s{sTB}, 81920
    s_waitcnt lgkmcnt(0)''')
    srd(SX, pX, XBYTES)
    E(f's_cmp_lt_u32 s{sW}, 5\ns_cbranch_scc0 f_w567')
    E('s_setprio 3')
    mod5(t3, f's{sROT}', f's{sW}')
    E(f'''s_mul_i32 s{t0}, s{sNP}, 20480
    s_add_u32 s{t0}, s{t0}, s{t2}
    s_lshl_b32 s{t1}, s{t3}, 8
    s_add_u32 s{t0}, s{t0}, s{t1}
    s_mul_i32 s{t4}, s{sNP}, 20480
    s_lshl_b32 s{t1}, s{sW}, 11
    s_add_u32 s{t4}, s{t4}, s{t1}
    s_mov_b32 m0, s{t4}
    s_add_u32 s{t1}, s{t0}, 128''')
    dma(vXa, SX, f's{t0}')
    E(f's_add_u32 m0, s{t4}, 1024\ns_add_u32 s{t0}, s{t0}, 10240'); dma(vXa, SX, f's{t1}')
    E(f's_add_u32 m0, s{t4}, 10240\ns_add_u32 s{t1}, s{t0}, 128'); dma(vXb, SX, f's{t0}')
    E(f's_add_u32 m0, s{t4}, 11264\ns_bitcmp1_b32 s{sJ}, 0'); dma(vXb, SX, f's{t1}')
    E(f's_cselect_b32 s{pWK}, s{pWV}, s{pWK}\ns_cselect_b32 s{pWK+1}, s{pWV+1}, s{pWK+1}')
    srd(SE, pWK, 25600)
    E(f'''s_mul_i32 s{t0}, s{t3}, 5120
    s_mul_i32 s{t1}, s{sW}, 5120
    s_add_u32 m0, s{t1}, {L_WKV}
    s_add_u32 s{t5}, s{t0}, 4096''')
    for i in range(4): dma(vL16, SE, f's{t0}', 1024*i)
    E(f's_add_u32 m0, s{t1}, {L_WKV+4096}\ns_nop 0'); dma(vL16, SE, f's{t5}')
    RG, XF, CA = 32, 48, 96
    E(f's_bitcmp1_b32 s{sJ}, 0\ns_cbranch_scc1 f_norg')
    srd(SF, pWR, 1280); srd(SD, pGW, 1280)
    E(f'''v_and_b32 v{a0}, 48, v{vL}
    s_lshl_b32 s{t0}, s{t3}, 8
    s_mov_b32 exec_lo, 0x00010001
    s_mov_b32 exec_hi, 0x00010001''')
    for i in range(4): E(f'buffer_load_dwordx4 {r(RG+4*i,4)}, v{a0}, {sr(SF,4)}, s{t0} offen offset:{64*i}')
    E('s_mov_b32 exec_lo, 0x00020002\ns_mov_b32 exec_hi, 0x00020002')
    for i in range(4): E(f'buffer_load_dwordx4 {r(RG+4*i,4)}, v{a0}, {sr(SD,4)}, s{t0} offen offset:{64*i}')
    E('s_mov_b64 exec, -1\nf_norg:\ns_barrier')
    srd(SW, pWQ, WBYTES)
    E(f'''s_lshl_b32 s{t0}, s{sW}, 6
    v_add_u32 v{a0}, s{t0}, v{vL}
    v_mul_u32_u24 v{a1}, 6554, v{a0}
    v_lshrrev_b32 v{a1}, 16, v{a1}
    v_mul_u32_u24 v{a2}, 10, v{a1}
    v_sub_u32 v{a2}, v{a0}, v{a2}
    v_bfe_u32 v{a3}, v{a1}, 2, 2
    v_lshlrev_b32 v{a3}, 3, v{a3}
    v_lshrrev_b32 v{a4}, 4, v{a1}
    v_lshl_add_u32 v{a3}, v{a4}, 2, v{a3}
    v_and_b32 v{a4}, 3, v{a1}
    v_add_u32 v{a3}, v{a3}, v{a4}
    v_mul_u32_u24 v{vWo}, 1280, v{a3}
    v_lshl_add_u32 v{vWo}, v{a2}, 4, v{vWo}
    s_mul_i32 s{t0}, s{sJ}, 160
    v_add_u32 v{vWo}, s{t0}, v{vWo}''')
    E(f'''v_bfe_u32 v{a0}, v{vL}, 3, 1
    v_mul_u32_u24 v{a0}, 10240, v{a0}
    v_and_b32 v{a1}, 7, v{vL}
    v_lshl_add_u32 v{a0}, v{a1}, 7, v{a0}
    v_bfe_u32 v{a1}, v{vL}, 1, 3
    v_lshrrev_b32 v{a2}, 4, v{vL}
    v_xor_b32 v{a1}, v{a1}, v{a2}
    v_lshl_add_u32 v{a0}, v{a1}, 4, v{a0}
    v_add_u32 v{a0}, s{t4}, v{a0}
    v_xor_b32 v{a1}, 64, v{a0}
    v_lshlrev_b32 v{a2}, 3, v{a2}
    v_bfe_u32 v{a3}, v{vL}, 2, 2
    v_add_u32 v{a2}, v{a2}, v{a3}
    v_mul_u32_u24 v{a2}, 40, v{a2}
    v_and_b32 v{a3}, 3, v{vL}
    v_lshl_add_u32 v{a2}, v{a3}, 3, v{a2}
    s_mul_i32 s{t0}, s{sW}, 5120
    s_add_u32 s{t0}, s{t0}, {L_WKV}
    v_add_u32 v{a2}, s{t0}, v{a2}
    s_mul_i32 s{t0}, s{sW}, 3072
    s_add_u32 s{t0}, s{t0}, {L_PART}
    v_add_u32 v{a3}, s{t0}, v{vL16}''')
    stamp(2)
    E('s_waitcnt vmcnt(0)')
    stamp(3)
    for kk in range(4):
        E(f'ds_read_b128 {r(XF+4*kk,4)}, v{a1 if kk & 1 else a0} offset:{(kk>>1)*1024}')
        for e in range(2):
            for s in range(2):
                E(f'ds_read_b64_tr_b16 {r(8*kk+4*e+2*s,2)}, v{a2} offset:{kk*1280 + s*160 + e*8}')
    E(f's_bitcmp1_b32 s{sJ}, 0\ns_cbranch_scc1 f_mv')
    for kk in range(4):
        E(f's_waitcnt lgkmcnt({5*(3-kk)})')
        for e, src in enumerate((8*kk, 8*kk+4, RG+4*kk)):
            c = '0' if kk == 0 else r(CA+4*e, 4)
            E(f'v_mfma_f32_16x16x32_bf16 {r(CA+4*e,4)}, {r(src,4)}, {r(XF+4*kk,4)}, {c}')
    E('s_branch f_md\nf_mv:')
    for kk in range(4):
        E(f's_waitcnt lgkmcnt({5*(3-kk)})')
        for e in range(2):
            c = '0' if kk == 0 else r(CA+4*e, 4)
            E(f'v_mfma_f32_16x16x32_bf16 {r(CA+4*e,4)}, {r(XF+4*kk,4)}, {r(8*kk+4*e,4)}, {c}')
    E(f'''f_md:
    v_mov_b32 v{a0}, {L_CNT}
    v_mov_b32 v{a1}, 1
    s_nop 5
    ds_write_b128 v{a3}, {r(CA,4)}
    ds_write_b128 v{a3}, {r(CA+4,4)} offset:1024
    s_mov_b64 exec, 0xffff
    ds_write_b128 v{a3}, {r(CA+8,4)} offset:2048
    s_mov_b64 exec, 1
    s_waitcnt lgkmcnt(0)
    ds_add_u32 v{a0}, v{a1}
    s_mov_b64 exec, -1
    s_setprio 1''')
    stamp(4)
    x_private('f_xa')
    w_issue(0, L_W1); w_issue(1, L_W1+20480)
    srd(SWS, pWS, WS_SIZE)
    idle_setup()
    E('s_waitcnt vmcnt(8)\ns_branch f_x0')
    E(f'''f_w567:''')
    srd(SWS, pWS, WS_SIZE)
    E(f'''s_cmp_eq_u32 s{sW}, 7
    s_cbranch_scc0 f_b0
    v_mov_b32 v0, 0
    v_mov_b32 v1, 0
    v_mov_b32 v2, 0
    v_mov_b32 v3, 0
    s_cmp_eq_u32 s2, 0
    s_cbranch_scc0 f_ncl
    v_lshlrev_b32 v{a7}, 7, v{vL}
    s_mov_b32 s{t0}, {WS_FLAG}
    buffer_store_dwordx4 v[0:3], v{a7}, {sr(SWS,4)}, s{t0} offen sc1
    f_ncl:
    s_mul_i32 s{t0}, s2, 320
    s_add_u32 s{t0}, s{t0}, {WS_Z}
    s_mov_b64 exec, 0xfffff
    buffer_store_dwordx4 v[0:3], v{vL16}, {sr(SWS,4)}, s{t0} offen sc1
    s_mov_b64 exec, -1
    f_b0:
    s_barrier''')
    x_private('f_xb')
    srd(SW, pWQ, WBYTES)
    E(f'v_mov_b32 v{vWo}, 0')
    idle_setup()
    stamp(2)
    E(f'''s_cmp_eq_u32 s{sW}, 7
    s_cbranch_scc1 f_w7
    s_waitcnt vmcnt(0)
    s_branch f_x0''')
    E('f_w7:\ns_setprio 3')
    srd(SD, pDBG, 256)
    E(f'''v_mov_b32 v0, 0
    s_cmp_eq_u32 s2, 0
    s_cbranch_scc0 f_ngo
    v_mov_b32 v4, 1
    s_waitcnt vmcnt(10)
    s_mov_b64 exec, 1
    buffer_store_dword v4, v0, {sr(SD,4)}, 0 offen sc1
    s_mov_b64 exec, -1
    f_ngo:''')
    E(f'''v_add_u32 v{a0}, {L_PART}, v{vL16}
    s_lshr_b32 s{t3}, s{sTB}, 1
    s_mul_i32 s{t3}, s{t3}, 10240
    s_lshl_b32 s{t4}, s{sTB}, 1
    s_lshr_b32 s{t5}, s{sNP}, 1
    s_add_u32 s{t4}, s{t4}, s{t5}
    s_and_b32 s{t4}, s{t4}, 3
    s_and_b32 s{t5}, s{sNP}, 1
    v_and_b32 v{a4}, 15, v{vL}
    v_bfe_u32 v{a5}, v{vL}, 4, 1
    v_lshrrev_b32 v{a6}, 5, v{vL}
    s_bitcmp1_b32 s{sJ}, 0
    s_cbranch_scc1 f_av
    v_add_u32 v{a1}, {L_PART+1792}, v{vL16}
    v_mul_u32_u24 v{a2}, 5120, v{a5}
    v_lshl_add_u32 v{a2}, v{a4}, 4, v{a2}
    v_lshl_add_u32 v{a2}, v{a6}, 3, v{a2}
    s_lshl_b32 s{t0}, s{t4}, 9
    s_lshl_b32 s{t1}, s{t5}, 8
    s_add_u32 s{t0}, s{t0}, s{t1}
    v_add_u32 v{a2}, s{t0}, v{a2}
    s_and_b32 s{t0}, s{t4}, 1
    s_mul_i32 s{t0}, s{t0}, 5120
    s_add_u32 s{t0}, s{t0}, s{t1}
    s_lshr_b32 s{t1}, s{t4}, 1
    s_lshl_b32 s{t1}, s{t1}, 3
    s_add_u32 s{t0}, s{t0}, s{t1}
    s_add_u32 s{t0}, s{t0}, {OFF_KT}
    v_add_u32 v{a3}, s{t0}, v{vL16}
    s_branch f_ae
    f_av:
    v_lshrrev_b32 v{a3}, 2, v{a4}
    v_lshlrev_b32 v{a1}, 8, v{a3}
    v_and_b32 v8, 3, v{vL}
    v_lshl_add_u32 v{a1}, v8, 4, v{a1}
    v_add_u32 v{a1}, {L_PART+1024+192}, v{a1}
    v_mul_u32_u24 v{a2}, 5120, v{a6}
    v_lshl_add_u32 v{a2}, v{a4}, 4, v{a2}
    v_lshl_add_u32 v{a2}, v{a5}, 3, v{a2}
    s_lshl_b32 s{t0}, s{t4}, 1
    s_add_u32 s{t0}, s{t0}, s{t5}
    s_mul_i32 s{t0}, s{t0}, 320
    s_add_u32 s{t0}, s{t0}, 2048
    v_add_u32 v{a2}, s{t0}, v{a2}
    v_lshrrev_b32 v9, 1, v{a3}
    v_mul_u32_u24 v9, 5120, v9
    v_lshl_add_u32 v9, v8, 4, v9
    v_and_b32 v{a3}, 1, v{a3}
    v_lshl_add_u32 v{a3}, v{a3}, 3, v9
    s_add_u32 s{t0}, s{t0}, 256
    v_add_u32 v{a3}, s{t0}, v{a3}
    f_ae:
    v_mov_b32 v{a5}, {L_CNT}''')
    def iss(): E(f'ds_read_b32 v8, v{a5}')
    def chk(): E(f's_waitcnt lgkmcnt(0)\nv_readfirstlane_b32 s{t0}, v8\ns_nop 0\ns_cmp_ge_u32 s{t0}, 5')
    E(f's_bitcmp1_b32 s{sJ}, 0\ns_cselect_b32 s{t2}, 1.0, {fbits(QSCALE)}')
    spin('f_c', iss, chk, first_issued=False, sleep=1)
    stamp(3)
    E(f'buffer_load_dword v{PL}, v0, {sr(SD,4)}, 0 offen sc1')
    for q in range(5):
        E(f'ds_read_b128 {r(8+8*q,4)}, v{a0} offset:{3072*q}\nds_read_b128 {r(12+8*q,4)}, v{a1} offset:{3072*q}')
    for q in range(1, 5):
        E(f's_waitcnt lgkmcnt({2*(4-q)})')
        for h in range(4): E(f'v_pk_add_f32 {r(8+2*h,2)}, {r(8+2*h,2)}, {r(8+8*q+2*h,2)}')
    for h in range(8): E(f'v_mul_f32 v{24+h}, s{t2}, v{8+h}')
    E(f'''v_cvt_pk_bf16_f32 v16, v24, v25
    v_cvt_pk_bf16_f32 v17, v26, v27
    v_cvt_pk_bf16_f32 v18, v28, v29
    v_cvt_pk_bf16_f32 v19, v30, v31
    v_min_u32 v16, -2, v16
    v_min_u32 v17, -2, v17
    buffer_store_dwordx2 v[16:17], v{a2}, {sr(SWS,4)}, s{t3} offen sc1
    s_mov_b64 exec, 0xffff
    buffer_store_dwordx2 v[18:19], v{a3}, {sr(SWS,4)}, s{t3} offen sc1
    s_mov_b64 exec, -1
    s_mov_b32 s{t1}, 1
    s_bitcmp1_b32 s{sJ}, 0
    s_cbranch_scc1 f_nk
    v_mul_f32 v13, {fbits(-LOG2E)}, v13
    v_exp_f32 v13, v13
    s_lshl_b32 s{t0}, s{sTB}, 6
    s_lshl_b32 s{t1}, s{sNP}, 4
    s_add_u32 s{t0}, s{t0}, s{t1}
    v_add_f32 v13, 1.0, v13
    v_rcp_f32 v13, v13
    v_add_u32 v20, s{t0}, v{a4}
    v_lshlrev_b32 v21, 2, v20
    s_mov_b32 s{t0}, {WS_G}
    s_mov_b32 exec_lo, 0xffff0000
    s_mov_b32 exec_hi, 0
    buffer_store_dword v13, v21, {sr(SWS,4)}, s{t0} offen sc1
    s_mov_b64 exec, -1
    v_sub_u32 v20, 2047, v20
    v_ashrrev_i32 v22, 31, v12
    v_or_b32 v22, 0x80000000, v22
    v_xor_b32 v22, v22, v12
    v_and_b32 v22, 0xfffff800, v22
    v_or_b32 v22, v22, v20''')
    for sh in (1, 2, 4, 8): E(f's_nop 1\nv_max_u32_dpp v22, v22, v22 row_shr:{sh}')
    E(f'''s_nop 1
    v_readlane_b32 s{t1}, v22, 31
    s_nop 1
    s_max_u32 s{t1}, s{t1}, 1
    f_nk:
    v_mov_b32 v20, s{t1}
    s_and_b32 s{t0}, s2, 63
    s_lshl_b32 s{t0}, s{t0}, 7
    s_lshr_b32 s{t1}, s2, 6
    s_lshl_b32 s{t1}, s{t1}, 2
    s_add_u32 s{t0}, s{t0}, s{t1}
    s_add_u32 s{t3}, s{t0}, {WS_FLAG}''')
    def iss(): E(f'buffer_load_dword v{PL}, v0, {sr(SD,4)}, 0 offen sc1')
    def chk(): E(f's_waitcnt vmcnt(0)\nv_readfirstlane_b32 s{t0}, v{PL}\ns_nop 0\ns_cmp_lg_u32 s{t0}, 0')
    spin('f_g', iss, chk)
    E(f'''s_mov_b64 exec, 1
    buffer_store_dword v20, v0, {sr(SWS,4)}, s{t3} offen sc1
    s_mov_b64 exec, -1
    s_setprio 1''')
    stamp(4)
    E('f_x0:')
    stamp(5)
    E(f's_cmp_eq_u32 s{sNT}, s{sNP}\ns_cbranch_scc0 f_x1\nv_mov_b32 v{a5}, {L_CNT}')
    def iss(): E(f'ds_read_b32 v8, v{a5}')
    def chk(): E(f's_waitcnt lgkmcnt(0)\nv_readfirstlane_b32 s{t0}, v8\ns_nop 0\ns_cmp_ge_u32 s{t0}, 5')
    spin('f_c2', iss, chk, first_issued=False, sleep=1)
    E('f_x1:')
    for p in range(5):
        for s in range(2): E(f'ds_read_b128 {r(XB+8*p+4*s,4)}, v{vXb if s else vXa} offset:{p*2048}')
    FL = lambda: E(f'buffer_load_dwordx4 {r(PL,4)}, v{a6}, {sr(SWS,4)}, s{t3} offen sc1')
    def FC():
        E(f'''s_waitcnt vmcnt(0)
        v_min3_u32 v{a5}, v{PL}, v{PL+1}, v{PL+2}
        v_min_u32 v{a5}, v{a5}, v{PL+3}
        v_cmp_eq_u32 vcc, 0, v{a5}
        s_nop 1
        s_cmp_eq_u64 vcc, 0''')
    for p, wt in enumerate((4, 4, 4, 4, 0)):
        if p == 4:
            E(f's_cmp_eq_u32 s{sW}, 7\ns_cbranch_scc0 g_n4\ns_mov_b32 s{t3}, {WS_FLAG}')
            spin('g_l', FL, FC)
            E('g_n4:')
        E(f's_waitcnt vmcnt({wt}) lgkmcnt(0)\ns_barrier')
        stamp(8+p)
        if p == 2: E(f'v_add_u32 v{vTr}, {L_W2 - L_W1 + (1 << 32)}, v{vTr}')
        rd, mm = gemm_stage(p == 0, (p if p < 2 else p-2)*20480, XB+8*p)
        def mid():
            if p < 3:
                E(f's_cmp_lt_u32 s{sW}, 5\ns_cbranch_scc0 g_w{p}')
                w_issue(p+2, L_W2+p*20480)
                E(f'g_w{p}:')
            if p == 3:
                E(f'''s_cmp_eq_u32 s{sW}, 7
                s_cbranch_scc0 g_n3
                v_and_b32 v{a6}, 7, v{vL}
                v_lshlrev_b32 v{a6}, 10, v{a6}
                s_and_b32 s{t0}, s2, 7
                s_lshl_b32 s{t0}, s{t0}, 7
                v_add_u32 v{a6}, s{t0}, v{a6}
                s_mov_b32 s{t3}, {WS_FLAG}''')
                FL()
                E('g_n3:')
            if p == 4:
                kv_row0()
        gemm_run(rd, mm, mid)
    stamp(13)
    E(f'''s_cmp_eq_u32 s{sW}, 7
    s_cbranch_scc0 g_n5
    v_lshlrev_b32 v{a6}, 7, v{vL}
    s_mov_b32 s{t3}, {WS_FLAG}''')
    FL()
    E(f'''g_n5:
    s_mul_i32 s{t0}, s{sW}, 5120
    s_add_u32 s{t0}, s{t0}, {L_QX}
    v_add_u32 v{a0}, s{t0}, v{vL16}
    s_nop 1''')
    for mt in range(5): E(f'ds_write_b128 v{a0}, {r(ACC+4*mt,4)} offset:{1024*mt}')
    E(f's_cmp_eq_u32 s{sW}, 7\ns_cbranch_scc0 g_n6\ns_mov_b32 s{t3}, {WS_FLAG}')
    spin('g_g', FL, FC)
    E(f'v_max3_u32 v{a5}, v{PL}, v{PL+1}, v{PL+2}\nv_max_u32 v{a5}, v{a5}, v{PL+3}')
    wave_max_u32(a5)
    E(f'''v_mov_b32 v{a4}, {L_KEY}
    s_mov_b32 exec_lo, 0
    s_mov_b32 exec_hi, 0x80000000
    ds_write_b32 v{a4}, v{a5}
    s_mov_b64 exec, -1
    g_n6:
    v_mov_b32 v{a7}, 1280
    v_bfe_u32 v{a0}, v{vL}, 4, 1
    v_mul_u32_u24 v{a0}, 5120, v{a0}
    v_and_b32 v{a1}, 15, v{vL}
    v_lshl_add_u32 v{a0}, v{a1}, 4, v{a0}
    s_and_b32 s{t0}, s{sNT}, 1
    s_mul_i32 s{t0}, s{t0}, 10240
    s_and_b32 s{t1}, s{sNT}, 2
    s_mul_i32 s{t1}, s{t1}, 1280
    s_add_u32 s{t0}, s{t0}, s{t1}
    s_add_u32 s{t0}, s{t0}, {L_QX}
    v_add_u32 v{a0}, s{t0}, v{a0}
    v_lshrrev_b32 v{a1}, 5, v{vL}
    v_xor_b32 v{a2}, s{sKH}, v{a1}
    v_mad_u32_u24 v{a2}, v{a2}, v{a7}, v{a0}
    v_lshl_add_u32 v{a0}, v{a1}, 8, v{a0}
    s_mul_i32 s{t0}, s{sKH}, 1280
    s_sub_u32 s{t1}, 1280, s{t0}
    v_add_u32 v{a1}, s{t1}, v{a0}
    v_add_u32 v{a0}, s{t0}, v{a0}
    v_mov_b32 v{a3}, {L_KEY}
    v_mov_b32 v{a4}, 0x3f80
    v_mov_b32 v{a5}, 0
    s_mov_b32 s{sMODE}, 0
    s_mov_b32 s{sIT}, 0
    s_setprio 0''')
    srd(SW, pWO, WBYTES)
    stamp(14)
    E('s_waitcnt vmcnt(0) lgkmcnt(0)\ns_barrier')
    stamp(15)
    QR = 96
    E(f'''ds_read_b128 {r(32,4)}, v{a2} offset:1024
    ds_read_b128 {r(36,4)}, v{a2} offset:{1024+20480}
    ds_read_b64 {r(KX,2)}, v{ADDR} offset:{OFF_KT}''')
    for q, av in enumerate((a0, a1)):
        for rp in range(2):
            for kh in range(2): E(f'ds_read_b128 {r(QR+16*q+8*rp+4*kh,4)}, v{av} offset:{512*rp+20480*kh}')
    E(f'''ds_read_b128 {r(KM[0],4)}, v{ADDR}
    ds_read_b32 v{a6}, v{a3}
    s_waitcnt lgkmcnt(10)
    v_pk_add_f32 v[32:33], v[32:33], v[36:37]
    v_pk_add_f32 v[34:35], v[34:35], v[38:39]
    v_cvt_pk_bf16_f32 v{QT}, v32, v33
    v_cvt_pk_bf16_f32 v{QT+1}, v34, v35
    s_cmp_eq_u32 s{sKH}, 0
    s_cselect_b32 s{sHOOK}, 0, 0x88
    v_mfma_f32_32x32x4_2b_bf16 {r(P[0],32)}, {r(KX,2)}, {r(QT,2)}, 0 cbsz:1 abid:0
    s_xor_b32 s{sHOOK}, s{sHOOK}, 0x7f''')
    for q, dst in enumerate((QA, QB)):
        for rp in range(2):
            b = QR + 16*q + 8*rp
            E(f'''s_waitcnt lgkmcnt({8-4*q-2*rp})
            v_pk_add_f32 {r(b,2)}, {r(b,2)}, {r(b+4,2)}
            v_pk_add_f32 {r(b+2,2)}, {r(b+2,2)}, {r(b+6,2)}
            v_cvt_pk_bf16_f32 v{dst+2*rp}, v{b}, v{b+1}
            v_cvt_pk_bf16_f32 v{dst+2*rp+1}, v{b+2}, v{b+3}''')
    E(f'''s_waitcnt lgkmcnt(0)
    v_readfirstlane_b32 s{sKEY}, v{a6}
    v_mfma_f32_32x32x16_bf16 {r(P[0],16)}, {r(KM[0],4)}, {r(QA,4)}, {r(P[0],16)}
    v_mfma_f32_32x32x16_bf16 {r(P[0]+16,16)}, {r(KM[0],4)}, {r(QB,4)}, {r(P[0]+16,16)}
    s_mov_b64 exec, {sr(sMASK,2)}
    ds_read_b128 {r(VV[0],4)}, v{ADDR} offset:{off_v(0,0)}
    ds_read_b128 {r(VV[0]+4,4)}, v{ADDR} offset:{off_v(0,1)}
    s_mov_b64 exec, -1
    ds_read_b128 {r(KM[1],4)}, v{ADDR} offset:512
    s_nop 5''')
    for b, d in ((0, 32), (16, 33)):
        E(f'v_max3_f32 v{d}, v{b}, v{b+1}, v{b+2}')
        for i in range(3, 15, 2): E(f'v_max3_f32 v{d}, v{d}, v{b+i}, v{b+i+1}')
        E(f'v_max_f32 v{d}, v{d}, v{b+15}')
    E(f'''s_nop 1
    v_permlane32_swap_b32 v32, v33
    v_max_f32 v32, v32, v33
    v_sub_f32 v32, {fbits(-XSHIFT)}, v32
    v_floor_f32 v32, v32
    v_lshrrev_b32 v32, 16, v32
    v_mov_b32 v33, 0
    s_nop 1
    v_mfma_f32_32x32x4_2b_bf16 {r(P[0],32)}, {r(a4,2)}, {r(32,2)}, {r(P[0],32)}
    v_mfma_f32_32x32x4_2b_bf16 {r(NEGM,32)}, {r(a4,2)}, {r(32,2)}, 0''')
    kv_rows('a_r1', 1, 2)
    stamp(16); stamp(40, True)
    E(f'''v_exp_f32 v0, v0
    v_exp_f32 v1, v1
    s_branch a_in''')
    E('.p2align 6\na_loop:')
    for t in range(4): period(t)
    if STAMPS:
        E(f'''s_memtime s[96:97]
        s_add_u32 s98, s{sIT}, 17
        s_mov_b32 m0, s98
        s_waitcnt lgkmcnt(0)
        v_writelane_b32 v254, s96, m0''')
    E(f'''v_add_u32 v{ADDR}, {BLK}, v{ADDR}
    s_add_u32 s{sIT}, s{sIT}, 1
    s_cmp_lt_u32 s{sIT}, 8
    s_cbranch_scc1 a_loop''')
    E(smf(OB, VV[1]+4, P[1]+24))
    stamp(41, True)
    XF, YT = 136, 152
    E(f'''s_setprio 0
    s_mul_i32 s{t0}, s{sW}, 3328
    v_add_u32 v{a0}, s{t0}, v{vL16}
    s_xor_b32 s{t1}, s{sW}, 4
    s_mul_i32 s{t1}, s{t1}, 3328
    v_add_u32 v{a1}, s{t1}, v{vL16}
    v_lshl_add_u32 v{a6}, v{vL}, 2, s{t0}
    v_lshl_add_u32 v{a7}, v{vL}, 2, s{t1}
    v_mov_b32 v{a2}, 0
    v_mov_b32 v{a3}, {T_BAD}
    ds_write_b32 v{a6}, v{NEGM+16} offset:{T_OX+3072}
    ds_write_b32 v{a3}, v{a2}''')
    for i in range(3): E(f'ds_write_b128 v{a0}, {r(OB+4*i,4)} offset:{T_OX+1024*i}')
    E(f'''s_and_b32 s{t0}, s{sNT}, 2
    s_add_u32 s{t0}, s{t0}, s{sKH}
    s_mul_i32 s{t0}, s{t0}, 5
    v_lshrrev_b32 v{a4}, 5, v{vL}
    v_add_u32 v{a4}, s{t0}, v{a4}
    v_and_b32 v{a5}, 1, v{a4}
    v_lshrrev_b32 v{a4}, 1, v{a4}
    v_lshlrev_b32 v{a4}, 8, v{a4}
    v_lshl_add_u32 v{a4}, v{a5}, 3, v{a4}
    v_and_b32 v{a5}, 15, v{vL}
    v_lshl_add_u32 v{a4}, v{a5}, 4, v{a4}
    v_bfe_u32 v{a5}, v{vL}, 4, 1
    v_mul_u32_u24 v{a5}, 2560, v{a5}
    s_and_b32 s{t0}, s{sNT}, 1
    s_mul_i32 s{t0}, s{t0}, 5120
    s_add_u32 s{t0}, s{t0}, {T_OS}
    v_add3_u32 v{a4}, v{a4}, v{a5}, s{t0}''')
    stamp(25)
    E('s_waitcnt lgkmcnt(0)\ns_barrier')
    stamp(26)
    E(f'ds_read_b32 v12, v{a7} offset:{T_OX+3072}')
    for i in (2, 0, 1): E(f'ds_read_b128 {r(4*i,4)}, v{a1} offset:{T_OX+1024*i}')
    E(f'''s_mov_b32 s{t0}, {fbits(2.0**-100)}
    s_mov_b32 s{t1}, {fbits(2.0**100)}
    s_waitcnt lgkmcnt(2)
    v_sub_f32 v13, v{NEGM}, v12
    v_cvt_i32_f32 v13, v13
    v_maximum3_f32 v19, v{OA+8}, v8, v8
    v_ldexp_f32 v14, v8, v13
    v_sub_u32 v13, 0, v13
    v_ldexp_f32 v15, v{OA+8}, v13
    v_add_f32 v14, v14, v{OA+8}
    v_add_f32 v15, v15, v8
    v_cmp_nle_f32 s[50:51], v19, s{t1}
    v_min_f32 v18, v14, v15
    v_rcp_f32 v14, v14
    v_rcp_f32 v15, v15
    v_cmp_nge_f32 vcc, v18, s{t0}
    v_mov_b32 v16, v14
    v_mov_b32 v17, v15
    s_or_b64 s[50:51], s[50:51], vcc
    s_and_b32 s50, s50, 0
    v_permlane32_swap_b32 v16, v14
    v_permlane32_swap_b32 v17, v15
    s_waitcnt lgkmcnt(0)''')
    for i in range(12): E(f'v_mul_f32 v{OA+i}, v{OA+i}, v14')
    for i in range(12): E(f'v_fmac_f32 v{OA+i}, v{i}, v15')
    E(f'v_maximum3_f32 v3, |v{OA}|, |v{OA+1}|, |v{OA+2}|')
    for i in range(3, 11, 2): E(f'v_maximum3_f32 v3, v3, |v{OA+i}|, |v{OA+i+1}|')
    E(f'''v_maximum3_f32 v3, v3, |v{OA+11}|, |v{OA+11}|
    s_mov_b32 s{t0}, 0x7f800000
    v_cmp_nlt_f32 vcc, v3, s{t0}''')
    for i in range(6): E(f'v_cvt_pk_bf16_f32 v{4+i}, v{OA+2*i}, v{OA+2*i+1}')
    E(f's_or_b64 s[50:51], s[50:51], vcc\ns_cbranch_scc0 t_ok')
    for i in range(6): E(f'v_min_u32 v{4+i}, -2, v{4+i}')
    E(f'''v_mov_b32 v{a2}, 1
    ds_write_b32 v{a3}, v{a2}
    t_ok:
    ds_write_b64 v{a4}, v[4:5]
    ds_write_b64 v{a4}, v[6:7] offset:256
    s_mov_b32 exec_hi, 0
    ds_write_b64 v{a4}, v[8:9] offset:512
    s_mov_b32 exec_hi, -1
    s_mul_i32 s{t0}, s{sW}, 1280
    s_add_u32 s{t0}, s{t0}, {T_OS}
    v_add_u32 v{a0}, s{t0}, v{vL16}
    s_mul_i32 s{t2}, s{sTB}, 81920
    s_add_u32 s{t2}, s{t2}, {WS_O}
    s_lshr_b32 s{t0}, s{sW}, 1
    s_mul_i32 s{t0}, s{t0}, 20480
    s_and_b32 s{t1}, s{sW}, 1
    s_mul_i32 s{t1}, s{t1}, 1280
    s_add_u32 s{t0}, s{t0}, s{t1}
    s_mul_i32 s{t1}, s{sJ}, 2560
    s_add_u32 s{t0}, s{t0}, s{t1}
    s_add_u32 s{t0}, s{t0}, s{t2}
    s_waitcnt lgkmcnt(0)
    s_barrier''')
    stamp(27)
    E(f'''ds_read_b32 v{a2}, v{a3}
    ds_read_b128 v[0:3], v{a0}
    ds_read_b128 v[4:7], v{a0} offset:1024
    s_waitcnt lgkmcnt(2)
    v_readfirstlane_b32 s{t1}, v{a2}
    s_nop 0
    s_cmp_gt_u32 s{t1}, s{sMODE}
    s_cbranch_scc1 a_exact
    s_waitcnt lgkmcnt(1)
    buffer_store_dwordx4 v[0:3], v{vL16}, {sr(SWS,4)}, s{t0} offen sc1
    s_mov_b64 exec, 0xffff
    s_waitcnt lgkmcnt(0)
    buffer_store_dwordx4 v[4:7], v{vL16}, {sr(SWS,4)}, s{t0} offen offset:1024 sc1
    s_mov_b64 exec, -1''')
    stamp(28)
    E(f's_mov_b32 s{sXP+5}, s{t2}')
    wo_issue('t_w', 4, 5, T_W3+20480, True)
    srd(SD, pOUT, XBYTES)
    E(f'''s_mov_b32 s{t2}, s{sXP+5}
    s_lshl_b32 s{t5}, s{sTB}, 6
    s_lshl_b32 s{t1}, s{sNT}, 4
    s_add_u32 s{t5}, s{t5}, s{t1}
    s_and_b32 s{sCB}, s{sKEY}, 0x7ff
    s_sub_u32 s{sCB}, 2047, s{sCB}
    s_sub_u32 s{sCB}, s{sCB}, s{t5}''')
    E(f'''s_mul_i32 s{t0}, s{sNT}, 20480
    s_add_u32 s{t2}, s{t2}, s{t0}
    s_lshl_b32 s{t0}, s{sKH}, 11
    s_add_u32 s{t2}, s{t2}, s{t0}''')
    for p in range(5):
        mod5(sXP+p, f's{sROT2}', p)
        E(f's_lshl_b32 s{sXP+p}, s{sXP+p}, 12\ns_add_u32 s{sXP+p}, s{sXP+p}, s{t2}')
    E(f'''v_add_u32 v{vTr}, {T_W0 - L_W2}, v{vTr}
    s_cmp_lt_u32 s{sCB}, 16
    s_cbranch_scc1 t_y
    s_waitcnt vmcnt(0)
    t_yret:''')
    stamp(29)
    def oload(p0):
        for p in range(p0, 5):
            for s in range(2): E(f'buffer_load_dwordx4 {r(XB+8*p+4*s,4)}, v{vL16}, {sr(SWS,4)}, s{sXP+p} offen offset:{1024*s} sc1')
    E('s_barrier')
    oload(0)
    for i in range(3):
        for h in range(2):
            E(f'v_lshlrev_b32 v{XF+4*i+2*h}, 16, v{XR+2*i+h}\nv_and_b32 v{XF+4*i+2*h+1}, 0xffff0000, v{XR+2*i+h}')
    E(f's_cmp_lt_u32 s{sCB}, 16\ns_cbranch_scc1 t_y2\nt_y2ret:\ns_mov_b32 s{t6}, 0')
    for p in range(5):
        if p == 3: E(f'v_add_u32 v{vTr}, {(1 << 32) + T_W3 - T_W0}, v{vTr}')
        rd, mm = gemm_stage(p == 0, (p if p < 3 else p-3)*20480, XB+8*p)
        def mid():
            b = XB + 8*p
            E(f'''t_s{p}:
            s_waitcnt vmcnt({2*(4-p)})
            v_max3_u32 v{a0}, v{b}, v{b+1}, v{b+2}
            v_max3_u32 v{a1}, v{b+3}, v{b+4}, v{b+5}
            v_max3_u32 v{a0}, v{a0}, v{b+6}, v{b+7}
            v_max_u32 v{a0}, v{a0}, v{a1}
            v_cmp_eq_u32 vcc, -1, v{a0}
            s_nop 1
            s_cmp_eq_u64 vcc, 0
            s_cbranch_scc0 t_r{p}
            t_c{p}:''')
            stamp(30+p)
        gemm_run(rd, mm, mid)
    stamp(35)
    E(f'''s_mul_i32 s{t0}, s{sNT}, 5440
    s_add_u32 s{t1}, s{t0}, {T_OS - 5440}
    s_cmp_eq_u32 s{sNT}, 0
    s_cselect_b32 s{t1}, {4*5440}, s{t1}
    s_cmp_eq_u32 s{sKH}, 0
    s_cselect_b32 s{t2}, s{t0}, s{t1}
    v_and_b32 v{a0}, 48, v{vL}
    v_add3_u32 v{a0}, v{a0}, v{vL16}, s{t2}''')
    for mt in range(5): E(f'ds_write_b128 v{a0}, {r(ACC+4*mt,4)} offset:{1088*mt}')
    for i in range(3): E(f'v_add_u32 v{a1+i}, s{t0}, v{vEl+i}\nv_add_u32 v{a4+i}, s{t1}, v{vEl+i}')
    E('s_waitcnt lgkmcnt(0)\ns_barrier')
    for i in range(3): E(f'ds_read_b128 {r(8*i,4)}, v{a1+i}\nds_read_b128 {r(8*i+4,4)}, v{a4+i}')
    E(f's_cmp_lt_u32 s{sCB}, 16\ns_cbranch_scc1 t_y3\nt_y3ret:')
    for i in range(3):
        if i == 2: E(f's_cmp_eq_u32 s{sKH}, 0\ns_cbranch_scc0 t_fin')
        a = 8*i
        E(f's_waitcnt lgkmcnt({4-2*i})')
        for q in range(0, 4, 2): E(f'v_pk_add_f32 {r(a+q,2)}, {r(a+q,2)}, {r(a+4+q,2)}')
        for q in range(4): E(f'v_sub_f32 v{a+q}, v{a+q}, v{XF+4*i+q}')
        for q in range(4): E(f'v_fma_f32 v{a+q}, v{a+q}, v{vG+i}, v{XF+4*i+q}')
        E(f'''v_cvt_pk_bf16_f32 v{a}, v{a}, v{a+1}
        v_cvt_pk_bf16_f32 v{a+1}, v{a+2}, v{a+3}
        buffer_store_dwordx2 {r(a,2)}, v{vEo+i}, {sr(SD,4)}, 0 offen''')
    E('t_fin:')
    stamp(36)
    if STAMPS: E('s_waitcnt vmcnt(0)')
    stamp(37); stamp(42, True); stamp_out()
    E('k_end:\ns_endpgm')
    for p in range(5):
        E(f'''t_r{p}:
        s_add_u32 s{t6}, s{t6}, 1
        s_cmp_gt_u32 s{t6}, {SPINMAX}
        s_cbranch_scc1 t_c{p}
        s_sleep 2''')
        oload(p)
        E(f's_branch t_s{p}')
    E(f'''t_y:
    v_min_u32 v{a1}, 53, v{vL}
    v_lshlrev_b32 v{a1}, 7, v{a1}
    s_mov_b32 s{t3}, {WS_Z+Z_C2}''')
    def iss(): E(f'buffer_load_dword v{a2}, v{a1}, {sr(SWS,4)}, s{t3} offen sc1')
    def chk(): E(f's_waitcnt vmcnt(0)\nv_cmp_ne_u32 vcc, 16, v{a2}\ns_nop 1\ns_cmp_eq_u64 vcc, 0')
    spin('t_c2', iss, chk, first_issued=False)
    E(f'''v_and_b32 v{a0}, 15, v{vL}
    v_mul_u32_u24 v{a1}, 2560, v{a0}
    v_lshrrev_b32 v{a2}, 4, v{vL}
    v_lshl_add_u32 v{a1}, v{a2}, 2, v{a1}
    s_mul_i32 s{t3}, s{sJ}, 80
    s_mul_i32 s{t0}, s{sKH}, 48
    s_add_u32 s{t3}, s{t3}, s{t0}
    s_add_u32 s{t3}, s{t3}, {WS_Z+Z_Y}''')
    for i in range(3):
        for c in range(4): E(f'buffer_load_dword v{YT+4*i+c}, v{a1}, {sr(SWS,4)}, s{t3} offen offset:{640*c+16*i} sc1')
    E(f'''s_branch t_yret
    t_y2:
    s_and_b32 s{t0}, s{sKEY}, 0xfffff800
    s_ashr_i32 s{t1}, s{t0}, 31
    s_not_b32 s{t1}, s{t1}
    s_or_b32 s{t1}, s{t1}, 0x80000000
    s_xor_b32 s{t0}, s{t0}, s{t1}
    v_mov_b32 v{a2}, s{t0}
    v_mul_f32 v{a2}, {fbits(-LOG2E)}, v{a2}
    v_exp_f32 v{a2}, v{a2}
    s_mul_i32 s{t0}, s{sKH}, 192
    v_add_f32 v{a2}, 1.0, v{a2}
    v_rcp_f32 v{a2}, v{a2}
    s_waitcnt vmcnt(10)''')
    for sh in (8, 4, 2, 1):
        for i in range(12): E(f'v_add_f32_dpp v{YT+i}, v{YT+i}, v{YT+i} row_ror:{sh}')
    for i in range(12): E(f'v_mul_f32 v{YT+i}, v{YT+i}, v{a2}')
    E(f'''v_and_b32 v{a1}, 48, v{vL}
    v_add_u32 v{a1}, s{t0}, v{a1}
    v_add_u32 v{a1}, {T_Y}, v{a1}''')
    for i in range(3): E(f'ds_write_b128 v{a1}, {r(YT+4*i,4)} offset:{64*i}')
    E('s_branch t_y2ret')
    E(f'''t_y3:
    s_mul_i32 s{t0}, s{sCB}, 20
    s_mul_i32 s{t1}, s{sKH}, 192
    s_sub_u32 s{t0}, s{t1}, s{t0}''')
    for i in range(3):
        E(f'''v_add_u32 v{a0}, s{t0}, v{vL}
        v_cmp_gt_u32 vcc, 20, v{a0}
        v_and_b32 v{a0}, 31, v{a0}
        v_lshlrev_b32 v{a0}, 4, v{a0}
        v_add_u32 v{a0}, {T_Y}, v{a0}
        ds_read_b128 {r(YT,4)}, v{a0}
        s_add_u32 s{t0}, s{t0}, 64
        s_waitcnt lgkmcnt(0)''')
        for q in range(4): E(f'v_cndmask_b32 v{YT+q}, 0, v{YT+q}, vcc\nv_add_f32 v{XF+4*i+q}, v{XF+4*i+q}, v{YT+q}')
    E('s_branch t_y3ret')
    E(f'''a_exact:
    s_mov_b32 s{sMODE}, 1
    s_cmp_eq_u32 s{sKH}, 0
    s_cselect_b32 s{sHOOK}, 0, 0xa0
    s_xor_b32 s{sHOOK}, s{sHOOK}, 0x61
    s_waitcnt vmcnt(0) lgkmcnt(0)
    s_barrier''')
    kv_row0(); kv_rows('x_r', 1, 8)
    attn_addr()
    E(f'''v_mov_b32 v{a4}, 0xff800000
    v_mov_b32 v{a5}, 0xff800000
    s_mov_b32 s{t0}, 0
    s_waitcnt vmcnt(0)
    s_barrier
    x_mx:''')
    for t in range(4):
        E(f'''ds_read_b128 {r(KM[0],4)}, v{a3} offset:{t*512}
        ds_read_b64 {r(KX,2)}, v{a3} offset:{OFF_KT+8*(t>>1)}
        s_waitcnt lgkmcnt(0)
        v_mfma_f32_32x32x4_2b_bf16 {r(P[0],32)}, {r(KX,2)}, {r(QT,2)}, 0 cbsz:1 abid:{t&1}
        s_nop 15
        s_nop 1
        v_mfma_f32_32x32x16_bf16 {r(P[0],16)}, {r(KM[0],4)}, {r(QA,4)}, {r(P[0],16)}
        v_mfma_f32_32x32x16_bf16 {r(P[0]+16,16)}, {r(KM[0],4)}, {r(QB,4)}, {r(P[0]+16,16)}
        s_nop 11''')
        for i in range(0, 16, 2):
            E(f'v_max3_f32 v{a4}, v{a4}, v{i}, v{i+1}\nv_max3_f32 v{a5}, v{a5}, v{16+i}, v{17+i}')
    E(f'''v_add_u32 v{a3}, {BLK}, v{a3}
    s_add_u32 s{t0}, s{t0}, 1
    s_cmp_lt_u32 s{t0}, 16
    s_cbranch_scc1 x_mx
    v_mov_b32 v0, v{a4}
    v_mov_b32 v1, v{a5}
    s_nop 1
    v_permlane32_swap_b32 v0, v{a4}
    v_permlane32_swap_b32 v1, v{a5}
    v_max_f32 v0, v0, v{a4}
    v_max_f32 v1, v1, v{a5}''')
    for i in range(16): E(f'v_sub_f32 v{NEGM+i}, 0, v0\nv_sub_f32 v{NEGM+16+i}, 0, v1')
    first_reads()
    for i in range(32): E(f'v_mov_b32 v{OA+i}, 0')
    E(f'''s_mov_b32 s{sIT}, 0
    s_waitcnt lgkmcnt(0)
    v_mfma_f32_32x32x4_2b_bf16 {r(P[0],32)}, {r(KX,2)}, {r(QT,2)}, {r(NEGM,32)} cbsz:1 abid:0
    s_nop 15
    s_nop 1
    v_mfma_f32_32x32x16_bf16 {r(P[0],16)}, {r(KM[0],4)}, {r(QA,4)}, {r(P[0],16)}
    v_mfma_f32_32x32x16_bf16 {r(P[0]+16,16)}, {r(KM[0],4)}, {r(QB,4)}, {r(P[0]+16,16)}
    s_nop 11
    v_exp_f32 v0, v0
    v_exp_f32 v1, v1
    s_branch a_in''')
    E(f'''a_hook:
    s_cmp_eq_u32 s{sIT}, 0
    s_cbranch_scc0 h_1
    s_waitcnt vmcnt(0) lgkmcnt(0)
    s_barrier
    s_cmp_eq_u32 s{sMODE}, 0
    s_cbranch_scc0 a_hookret''')
    E(f'''s_cmp_eq_u32 s{sKH}, 0
    s_cbranch_scc1 h_0A
    s_setprio 2
    s_branch a_hookret
    h_0A:
    s_setprio 1''')
    kv_rows('h_r', 2, 8, 1)
    kv_rows('h_r2', 2, 3, 0)
    E('s_waitcnt vmcnt(3)')
    flag_set(F_B)
    kv_rows('h_r3', 3, 8, 0)
    srd(SF, pWD, FBYTES)
    E(f'''s_mul_i32 s{t0}, s2, {8*1280}
    s_mul_i32 s{t1}, s{sNT}, 320
    s_add_u32 s{t0}, s{t0}, s{t1}
    s_add_u32 s{t1}, s{t0}, 5120
    v_lshlrev_b32 v{a7}, 3, v{vL}''')
    for i in range(8):
        E(f'buffer_load_dwordx2 {r(FF+2*i,2)}, v{a7}, {sr(SF,4)}, s{t0+(i>>2)} offen offset:{(i&3)*1280}')
    E(f'''s_branch a_hookret
    h_1:
    s_cmp_eq_u32 s{sKH}, 0
    s_cbranch_scc1 h_A1
    s_cmp_eq_u32 s{sIT}, 1
    s_cbranch_scc0 h_B2''')
    flag_wait('h_fb', F_B)
    E(f'''s_branch a_hookret
    h_B2:
    s_cmp_eq_u32 s{sIT}, 2
    s_cbranch_scc0 h_B4
    v_mov_b64 {r(PL,2)}, -1
    v_mov_b64 {r(PL+2,2)}, -1
    s_mul_i32 s{t0}, s{sTB}, 81920
    s_mul_i32 s{t1}, s{sNT}, 20480
    s_add_u32 s{t0}, s{t0}, s{t1}
    s_mul_i32 s{t1}, s{sJ}, 2560
    s_add_u32 s{t0}, s{t0}, s{t1}
    s_add_u32 s{t0}, s{t0}, {WS_O}
    buffer_store_dwordx4 {r(PL,4)}, v{vL16}, {sr(SWS,4)}, s{t0} offen sc1
    buffer_store_dwordx4 {r(PL,4)}, v{vL16}, {sr(SWS,4)}, s{t0} offen offset:1024 sc1
    s_mov_b32 exec_hi, 0
    buffer_store_dwordx4 {r(PL,4)}, v{vL16}, {sr(SWS,4)}, s{t0} offen offset:2048 sc1
    s_mov_b32 exec_hi, -1
    s_bitcmp1_b32 s2, 7
    s_cselect_b32 s{pWG}, s{pWU}, s{pWG}
    s_cselect_b32 s{pWG+1}, s{pWU+1}, s{pWG+1}''')
    srd(SF, pWG, FBYTES)
    E(f'''s_lshl_b32 s{t0}, s2, 2
    s_add_u32 s{t0}, s{t0}, s{sNT}
    s_and_b32 s{sKR}, s{t0}, 31
    s_bfe_u32 s{sCB}, s{t0}, 0x40005
    s_and_b32 s{t0}, s{sKEY}, 0x7ff
    s_sub_u32 s{t0}, 2047, s{t0}
    s_mul_i32 s{t0}, s{t0}, 1280
    s_mul_i32 s{t1}, s{sKR}, 40
    s_add_u32 s{t0}, s{t0}, s{t1}
    s_add_u32 s50, s{pX}, s{t0}
    s_addc_u32 s51, s{pX+1}, 0
    s_load_dwordx8 {sr(sXP,8)}, s[50:51], 0
    s_load_dwordx2 {sr(sXP+8,2)}, s[50:51], 32
    s_mul_i32 s{t0}, s{sKR}, {20*3456}
    s_mul_i32 s{t1}, s{sCB}, 216
    s_add_u32 s{t0}, s{t0}, s{t1}
    v_lshlrev_b32 v{a7}, 2, v{vL}''')
    for i in range(10):
        E(f'''buffer_load_dword v{FF+2*i}, v{a7}, {sr(SF,4)}, s{t0} offen
        buffer_load_dword v{FF+2*i+1}, v{a7}, {sr(SF,4)}, s{t0} offen offset:3456
        s_add_u32 s{t0}, s{t0}, 6912''')
    E(f'''s_branch a_hookret
    h_B4:
    s_cmp_eq_u32 s{sIT}, 4
    s_cbranch_scc0 h_B5
    s_mov_b32 s{t0}, 0x05040100
    s_mov_b32 s{t1}, 0x07060302
    v_mov_b32 v{a1}, 0
    v_mov_b32 v{a2}, 0
    v_lshlrev_b32 v{a7}, 2, v{vL}
    s_waitcnt vmcnt(0)''')
    for i in range(10):
        E(f'''v_perm_b32 v{a4}, v{FF+2*i+1}, v{FF+2*i}, s{t0}
        v_perm_b32 v{a5}, v{FF+2*i+1}, v{FF+2*i}, s{t1}
        v_dot2c_f32_bf16 v{a1}, s{sXP+i}, v{a4}
        v_dot2c_f32_bf16 v{a2}, s{sXP+i}, v{a5}''')
    def arrive(off):
        E(f'''s_lshr_b32 s{t0}, s2, 2
        s_lshl_b32 s{t0}, s{t0}, 7
        s_add_u32 s{t0}, s{t0}, {WS_Z+off}
        v_mov_b32 v{a1}, 1
        v_mov_b32 v{a2}, 0
        s_waitcnt vmcnt(0)
        s_mov_b64 exec, 1
        buffer_atomic_add v{a1}, v{a2}, {sr(SWS,4)}, s{t0} offen
        s_mov_b64 exec, -1
        s_branch a_hookret''')
    E(f'''s_lshr_b32 s{t0}, s2, 7
    s_mul_i32 s{t0}, s{t0}, 6912
    s_mul_i32 s{t1}, s{sCB}, 216
    s_add_u32 s{t0}, s{t0}, s{t1}
    s_add_u32 s{t0}, s{t0}, {WS_Z+Z_H}
    s_mov_b32 exec_hi, 0x3fffff
    buffer_atomic_add_f32 v{a1}, v{a7}, {sr(SWS,4)}, s{t0} offen
    buffer_atomic_add_f32 v{a2}, v{a7}, {sr(SWS,4)}, s{t0} offen offset:3456
    s_mov_b32 exec_hi, -1
    s_branch a_hookret
    h_B5:
    s_cmp_eq_u32 s{sIT}, 5
    s_cbranch_scc0 h_B6''')
    arrive(Z_C1)
    E(f'''h_B6:
    s_cmp_eq_u32 s{sIT}, 6
    s_cbranch_scc0 h_B7
    s_setprio 0
    s_waitcnt lgkmcnt(0)''')
    flag_set(F_B6)
    xg_loads()
    flag_wait('h_f6', F_B6)
    wo_issue('h_w', 0, 3, T_W0)
    E('s_branch a_hookret\nh_B7:')
    flag_wait('h_f5', F_A5)
    wo_issue('h_w3', 3, 4, T_W3)
    E('s_branch a_hookret')
    E(f'''h_A1:
    s_cmp_eq_u32 s{sIT}, 1
    s_cbranch_scc0 h_A2
    s_waitcnt vmcnt(8)''')
    flag_set(F_A)
    flag_wait('h_fa', F_A)
    E(f'''s_branch a_hookret
    h_A2:
    s_mov_b32 s{t3}, {WS_Z+Z_C1}
    s_cmp_eq_u32 s{sIT}, 2
    s_cbranch_scc0 h_A3
    v_lshlrev_b32 v{a1}, 7, v{vL}''')
    def iss(): E(f'buffer_load_dword v{a2}, v{a1}, {sr(SWS,4)}, s{t3} offen sc1')
    def chk(): E(f's_waitcnt vmcnt(0)\nv_cmp_ne_u32 vcc, 16, v{a2}\ns_nop 1\ns_cmp_eq_u64 vcc, 0')
    iss()
    E(f'''s_branch a_hookret
    h_A3:
    s_cmp_eq_u32 s{sIT}, 3
    s_cbranch_scc0 h_A4''')
    spin('h_c1', iss, chk)
    E(f'''s_cmp_lt_u32 s2, 216
    s_cbranch_scc1 h_A3b
    s_and_b32 s{sHOOK}, s{sHOOK}, 0xef
    s_branch a_hookret
    h_A3b:
    s_lshl_b32 s{t0}, s2, 4
    s_add_u32 s{t0}, s{t0}, {WS_Z+Z_H}
    s_add_u32 s{t1}, s{t0}, 6912
    v_and_b32 v{a1}, 3, v{vL}
    v_lshlrev_b32 v{a1}, 2, v{a1}
    buffer_load_dword v{FF+16}, v{a1}, {sr(SWS,4)}, s{t0} offen sc1
    buffer_load_dword v{FF+17}, v{a1}, {sr(SWS,4)}, s{t0} offen offset:3456 sc1
    buffer_load_dword v{FF+18}, v{a1}, {sr(SWS,4)}, s{t1} offen sc1
    buffer_load_dword v{FF+19}, v{a1}, {sr(SWS,4)}, s{t1} offen offset:3456 sc1
    s_branch a_hookret
    h_A4:
    s_cmp_eq_u32 s{sIT}, 4
    s_cbranch_scc0 h_A5
    s_waitcnt vmcnt(0)
    v_mul_f32 v{a1}, {fbits(-LOG2E)}, v{FF+16}
    v_mul_f32 v{a2}, {fbits(-LOG2E)}, v{FF+17}
    v_exp_f32 v{a1}, v{a1}
    v_exp_f32 v{a2}, v{a2}
    v_mul_f32 v{FF+16}, v{FF+16}, v{FF+18}
    v_add_f32 v{a1}, 1.0, v{a1}
    v_add_f32 v{a2}, 1.0, v{a2}
    v_rcp_f32 v{a1}, v{a1}
    v_rcp_f32 v{a2}, v{a2}
    v_mul_f32 v{FF+17}, v{FF+17}, v{FF+19}
    v_mul_f32 v{a1}, v{a1}, v{FF+16}
    v_mul_f32 v{a2}, v{a2}, v{FF+17}
    v_cvt_pk_bf16_f32 v{a1}, v{a1}, v{a2}
    s_mov_b32 s{t0}, 0x05040100
    s_mov_b32 s{t1}, 0x07060302''')
    for q in range(4): E(f'v_readlane_b32 s{sXP+q}, v{a1}, {q}')
    for c in range(4): E(f'v_mov_b32 v{FF+16+c}, 0')
    for q in range(4):
        a, b = FF+4*q, FF+4*q+2
        E(f'''v_perm_b32 v{a1}, v{b}, v{a}, s{t0}
        v_perm_b32 v{a2}, v{b}, v{a}, s{t1}
        v_perm_b32 v{a4}, v{b+1}, v{a+1}, s{t0}
        v_perm_b32 v{a5}, v{b+1}, v{a+1}, s{t1}
        v_dot2c_f32_bf16 v{FF+16}, s{sXP+q}, v{a1}
        v_dot2c_f32_bf16 v{FF+17}, s{sXP+q}, v{a2}
        v_dot2c_f32_bf16 v{FF+18}, s{sXP+q}, v{a4}
        v_dot2c_f32_bf16 v{FF+19}, s{sXP+q}, v{a5}''')
    E(f'''s_and_b32 s{t0}, s2, 15
    s_mul_i32 s{t0}, s{t0}, 2560
    s_mul_i32 s{t1}, s{sNT}, 160
    s_add_u32 s{t0}, s{t0}, s{t1}
    s_add_u32 s{t0}, s{t0}, {WS_Z+Z_Y}
    v_lshlrev_b32 v{a1}, 2, v{vL}
    s_mov_b32 exec_hi, 0xff''')
    for c in range(4): E(f'buffer_atomic_add_f32 v{FF+16+c}, v{a1}, {sr(SWS,4)}, s{t0} offen offset:{640*c}')
    E(f'''s_mov_b32 exec_hi, -1
    s_branch a_hookret
    h_A5:
    s_cmp_eq_u32 s{sIT}, 5
    s_cbranch_scc0 h_A6
    s_waitcnt lgkmcnt(0)''')
    flag_set(F_A5)
    xg_loads()
    E('s_branch a_hookret\nh_A6:')
    flag_wait('h_f5a', F_A5)
    E(f's_bitcmp1_b32 s{sHOOK}, 4\ns_cbranch_scc0 a_hookret')
    arrive(Z_C2)

def main(path):
    ref = open(f'cdna_kernels/{NAME}.s.ref').read().splitlines()
    head = [l for l in ref if l.startswith(';') and '@launch' not in l]
    head += ['; @launch grid=(256,1,1) block=(512,1,1) lds=163840']
    kernel()
    txt = '\n'.join(head) + '\n.amdgcn_target "amdgcn-amd-amdhsa--gfx950"\n.text\n' + '\n'.join(L) + f'''
.section .rodata,"a"
.p2align 6
.amdhsa_kernel {K}
  .amdhsa_next_free_vgpr 256
  .amdhsa_next_free_sgpr 102
  .amdhsa_accum_offset 256
  .amdhsa_group_segment_fixed_size 0
  .amdhsa_kernarg_size 112
  .amdhsa_user_sgpr_count 2
  .amdhsa_user_sgpr_kernarg_segment_ptr 1
  .amdhsa_system_sgpr_workgroup_id_x 1
  .amdhsa_float_denorm_mode_32 3
.end_amdhsa_kernel
'''
    open(path, 'w').write(txt)
if __name__ == '__main__':
    main(sys.argv[1] if len(sys.argv) > 1 else 'f1.s')
```

```python
import sys, math, struct, os
NAME = 'gated_mix__grouped_kv_mqa__moe_arch_mod__prompt'
K = NAME + '_kernel'
L = []
def E(s=''):
    for x in s.split('\n'):
        x = x.strip()
        if x: L.append(x if x.endswith(':') or x.startswith('.') else '    ' + x)
def r(a, n): return f'v[{a}:{a+n-1}]'
def sr(a, n): return f's[{a}:{a+n-1}]'
def fbits(x): return '0x%08x' % struct.unpack('<I', struct.pack('<f', x))[0]
def u32(x): return x & 0xffffffff
env = os.environ.get
STAMPS = int(env('STAMPS', '0')); STSET = env('ST', ''); OPT = env('OPT', '').split(',')
ORDER = env('ORDER', 'xk|'); PB = int(env('PB', '3')); NT = env('NT', 'xf'); PW = int(env('PW', '3')); SPRIO = int(env('SPRIO', '3')); NPRE = int(env('NPRE', '2')); DEPTH = int(env('DEPTH', '2')); OSM = env('OSM', 'sc1'); OLM = env('OLM', 'sc1')

WS_FLAG = 0x30000; WS_G = 0x34000; WS_Z = 0x40000
Z_H = 0; Z_Y = 16384; Z_C1 = 57344; Z_C2 = 65536
WS_O = 0x80000
WS_SIZE = 0x800000 if STAMPS else 0x300000
XBYTES = 2048*640*2; WBYTES = 640*640*2; FBYTES = 640*1728*2
QSCALE = math.log2(math.e)/math.sqrt(20.0); LOG2E = math.log2(math.e)
XSHIFT = float(env('XS', '88'))
SPINMAX = 100000
pX, pWQ, pWK, pWV, pWO, pWR, pWG, pWU, pWD, pGW, pOUT, pDBG, pWS = 64, 66, 68, 70, 72, 76, 78, 80, 82, 84, 86, 88, 90
sKH, sW, sTB, sJ, sNT = 3, 4, 5, 6, 7
SX, SW, SE, SWS, SF, SD = 8, 12, 16, 20, 24, 28
sROT, sNP, sKEY, sIT, sHOOK, sMODE = 32, 33, 34, 35, 36, 37
sMASK = 38
t0, t1, t2, t3, t4, t5, t6, t7 = range(40, 48)
sKR, sCB = 48, 49
sLOC = 63
sKT = 62
sXP = 52
sTAB = 94
sRET = 92
P = [0, 32]; OA, OB = 64, 80; NEGM = 96
QA, QB, QT = 128, 132, 136
KM = [140, 144]; KX, KY = 148, 150
VV = [152, 160]
IDX, ADDR = 168, 169
FF = 172
vL16, vW40, vTr, vWo = 200, 201, 202, 203
a0, a1, a2, a3, a4, a5, a6, a7 = range(204, 212)
PL = 212
vEo, vEl, XR, vG = 216, 219, 222, 228
vL = 231
vOa = 170
vF = 255
vGa = 196
vC = 240
vXa, vXb, vQw = 232, 233, 234
BLK, HALF, SETB, OFF_KT = 10240, 5120, 81920, 4608
L_WKV = 81920; L_PART = 107520; L_CNT = L_PART + 2048 + 512
WSLOT = [122880, 143360, 81920, 122880, 143360]
L_QF = 32768
F_D, F_W, T_BAD, T_KEY, T_Y, F_D1, F_K = 0, 16, 32, 48, 64, 384, 400
T_W = 512; T_FX = 104448

EVT = env('EVT')
def stamp(i, real=False):
    if EVT and int(EVT) == i: E('s_memrealtime s[100:101]\ns_waitcnt lgkmcnt(0)'); return
    if not STAMPS: return
    if i == 99: return
    if STSET and not real and i > 1 and str(i) not in STSET.split(','): return
    E(f'''{'s_memrealtime' if real else 's_memtime'} s[96:97]
    s_waitcnt lgkmcnt(0)
    v_writelane_b32 v254, s96, {i}''')
def start_stamp():
    if STAMPS: E('v_writelane_b32 v254, s96, 0\nv_writelane_b32 v254, s98, 1')
def srd(d, p, nbytes):
    E(f's_mov_b32 s{d}, s{p}\ns_and_b32 s{d+1}, s{p+1}, 0xffff\ns_mov_b32 s{d+2}, {nbytes}\ns_mov_b32 s{d+3}, 0x20000')
def mod5(d, a, b):
    E(f's_add_u32 s{d}, {a}, {b}\ns_cmp_ge_u32 s{d}, 5\ns_cselect_b32 s{t7}, 5, 0\ns_sub_u32 s{d}, s{d}, s{t7}')
def dma(v, S, soff, off=0, mods=''):
    E(f'buffer_load_dwordx4 v{v}, {sr(S,4)}, {soff} offen {"offset:%d " % off if off else ""}{mods} lds')
def smf(o, a, b): return f'v_smfmac_f32_32x32x32_bf16 {r(o,16)}, {r(a,4)}, {r(b,8)}, v{IDX}'
def mf16(d, a, b, c): E(f'v_mfma_f32_16x16x32_bf16 {r(d,4)}, {r(a,4)}, {r(b,4)}, {"0" if c is None else r(c,4)}')
def off_v(t, i): return 2048 + (2*t+i)*320
def spin(tag, issue, check, first_issued=True, sleep=2):
    E(f's_mov_b32 s{t6}, 0')
    if not first_issued: issue()
    E(f'{tag}_sp:')
    check()
    E(f'''s_cbranch_scc1 {tag}_ok
    s_add_u32 s{t6}, s{t6}, 1
    s_cmp_gt_u32 s{t6}, {SPINMAX}
    s_cbranch_scc1 {tag}_ok
    {f's_sleep {sleep}' if sleep else ''}''')
    issue()
    E(f's_branch {tag}_sp\n{tag}_ok:')

WP = 0
def ld_issue(pos, mid=None):
    mod5(t2, f's{sROT}', pos)
    E(f's_lshl_b32 s{t0}, s{t2}, 8')
    for i in range(3):
        E(f's_add_u32 m0, s{sXP+3+i}, {pos*16384}\ns_add_u32 s{t1}, s{t0}, s{sXP+i}'); dma(vWo, SX, f's{t1}', 0, 'nt'*('r' in NT))
        E(f's_add_u32 m0, s{sXP+3+i}, {pos*16384+8192}\ns_add_u32 s{t1}, s{t1}, 128'); dma(vWo, SX, f's{t1}', 0, 'nt'*('r' in NT))
    E(f's_add_u32 m0, s{sXP+6}, {WSLOT[pos]}\ns_mul_i32 s{t0}, s{t2}, 163840')
    for c in range(10):
        if c: E('s_add_u32 m0, m0, 2048\n' + (f's_add_u32 s{t0}, s{t0}, 81920' if c == 5 else 's_nop 0'))
        if c == 5 and mid: mid()
        dma(WP + c % 5, SW, f's{t0}', 0, 'nt'*('w' in NT or ('0' in NT and pos == 0)))
def kv_rows(tag, i0, i1):
    def copy():
        E(f's_mul_i32 s{t0}, s{t5}, 20480\ns_mov_b32 m0, s{t2}\ns_add_u32 s{t0}, s{t0}, s{t6}')
        for i in range(4): dma(vL16, SWS, f's{t0}', 1024*i, 'sc1')
        E(f's_add_u32 m0, s{t2}, 4096\ns_add_u32 s{t0}, s{t0}, 4096'); dma(vL16, SWS, f's{t0}', 0, 'sc1')
    E(f's_mul_i32 s{t6}, s{sNT}, 5120')
    if i0 == 0:
        E(f's_mov_b32 s{t2}, s{t6}\ns_and_b32 s{t5}, s2, 7'); copy(); i0 = 1
        if i1 == 1: return
    E(f'''s_add_u32 s{t2}, s{t6}, {i0*20480}
    s_add_u32 s{t3}, s{sJ}, {i0-1}
    {tag}:
    s_cmp_ge_u32 s{t3}, 7
    s_cselect_b32 s{t5}, 7, 0
    s_sub_u32 s{t3}, s{t3}, s{t5}
    s_add_u32 s{t3}, s{t3}, 1
    s_add_u32 s{t5}, s2, s{t3}
    s_and_b32 s{t5}, s{t5}, 7''')
    copy()
    E(f's_add_u32 s{t2}, s{t2}, 20480\ns_cmp_lt_u32 s{t2}, {i1*20480}\ns_cbranch_scc1 {tag}')
def wo_issue(tag, p0, p1, lds):
    tab = sum(v << (6*i) for i, v in enumerate((0, 1, 5, 6, 10, 11, 15, 16, 4, 9)))
    mod5(t3, f's{sROT}', p0)
    E(f'''s_lshl_b32 s{t3}, s{t3}, 4
    s_add_u32 s{t3}, s{t3}, s{sNT}
    s_mul_i32 s{t2}, s{sNT}, 640
    s_add_u32 s{t2}, s{t2}, {lds}
    s_add_u32 s{t4}, s{t2}, {(p1-p0)*20480}
    s_mov_b32 s{sTAB}, {tab & 0xffffffff:#x}
    s_mov_b32 s{sTAB+1}, {tab >> 32:#x}
    s_mov_b32 exec_hi, 0xff
    {tag}:
    s_mul_i32 s{t5}, s{t3}, 205
    s_lshr_b32 s{t5}, s{t5}, 11
    s_mul_i32 s{t5}, s{t5}, 10
    s_sub_u32 s{t6}, s{t3}, s{t5}
    s_cmp_lt_u32 s{t6}, 8
    s_cselect_b32 s{t7}, 2, 10
    s_mul_i32 s{t6}, s{t6}, 6
    s_lshr_b64 s[50:51], {sr(sTAB,2)}, s{t6}
    s_and_b32 s{t6}, s50, 63
    s_lshl1_add_u32 s{t6}, s{t5}, s{t6}
    s_add_u32 s{t7}, s{t7}, s{t6}
    s_mov_b32 m0, s{t2}
    s_mul_i32 s{t6}, s{t6}, 5120''')
    dma(vW40, SW, f's{t6}')
    E(f's_add_u32 m0, s{t2}, 2560\ns_mul_i32 s{t7}, s{t7}, 5120')
    dma(vW40, SW, f's{t7}')
    E(f'''s_add_u32 s{t3}, s{t3}, 4
    s_cmp_ge_u32 s{t3}, 80
    s_cselect_b32 s{t5}, 80, 0
    s_sub_u32 s{t3}, s{t3}, s{t5}
    s_add_u32 s{t2}, s{t2}, 5120
    s_cmp_lt_u32 s{t2}, s{t4}
    s_cbranch_scc1 {tag}
    s_mov_b32 exec_hi, -1''')

def ctl_wait(tag, word, need, sleep=0, pre=False):
    test = f'v_cmp_gt_u32 vcc, {need}, v{PL+3}\ns_sub_u32 s{t6}, s{t6}, 1\ns_cselect_b32 s{t0}, 0, {word}\ns_and_b32 s{t0}, vcc_lo, s{t0}'
    E(f's_mov_b32 s{t6}, {SPINMAX*4}')
    if pre: E(test + f'\ns_cbranch_scc0 {tag}_ok')
    E(f'''{tag}_sp:
    {f's_sleep {sleep}' if sleep else ''}
    ds_read_b32 v{PL+3}, v{vC}
    s_waitcnt lgkmcnt(0)
    {test}
    s_cbranch_scc1 {tag}_sp
    {tag}_ok:''')
def flag_set(off):
    E(f's_lshl_b32 s{t0}, s{sNT}, 2\nv_mov_b32 v{a0}, -1\nv_mov_b32 v{a1}, s{t0}\nds_write_b32 v{a1}, v{a0} offset:{off}')
def flag_read(off): E(f'ds_read_b32 v{PL}, v{vF} offset:{off}')
SIDE = []
def flag_wait(tag, off, issued=False, inline=False):
    if inline:
        E(f'''v_cmp_ne_u32 vcc, -1, v{PL}
        s_nop 0
        s_cmp_eq_u64 vcc, 0
        s_cbranch_scc0 {tag}_w
        {tag}_r:''')
        SIDE.append(lambda: (E(f'{tag}_w:'), flag_wait(tag, off), E(f's_branch {tag}_r')))
        return
    def chk(): E(f's_waitcnt lgkmcnt(0)\nv_cmp_ne_u32 vcc, -1, v{PL}\ns_nop 0\ns_cmp_eq_u64 vcc, 0')
    spin(tag, lambda: flag_read(off), chk, first_issued=issued, sleep=4)
def xg_loads():
    E(f's_mov_b32 s{t0}, {WS_G}\ns_mov_b32 s{t1}, {(1 << 32)//1280 + 1}')
    for i in range(3):
        E(f'''v_mul_hi_u32 v{a0}, v{vEo+i}, s{t1}
        buffer_load_dwordx2 {r(XR+2*i,2)}, v{vEo+i}, {sr(SX,4)}, 0 offen
        v_lshlrev_b32 v{a0}, 2, v{a0}
        buffer_load_dword v{vG+i}, v{a0}, {sr(SWS,4)}, s{t0} offen sc1''')
def attn_consts():
    E(f'''v_and_b32 v{a1}, 31, v{vL}
    v_lshrrev_b32 v{a2}, 5, v{vL}
    v_mul_u32_u24 v{a2}, {HALF}, v{a2}
    v_lshl_add_u32 v{ADDR}, v{a1}, 4, v{a2}
    v_mov_b32 v{IDX}, 0xdddd
    v_cmp_eq_u32 vcc, 20, v{a1}
    v_mov_b32 v{a2}, 0x3f803f80
    s_mov_b32 s{sMASK}, 0xfffff
    s_mov_b32 s{sMASK+1}, 0xfffff
    v_cndmask_b32 v{VV[0]}, 0, v{a2}, vcc
    v_cndmask_b32 v{VV[0]+1}, 0, v{a2}, vcc''')
    for i in range(2, 16, 2): E(f'v_mov_b64 {r(VV[0]+i,2)}, {r(VV[0],2)}')
    for i in range(0, 32, 2): E(f'v_mov_b64 {r(OA+i,2)}, 0')

def qtab(mt):
    c = 0
    for g in range(4):
        hd, sub = divmod(4*mt + g, 5)
        c |= ((hd & 1)*256 + ((hd >> 1)*1024 + (sub & 1)*512 + (sub >> 1)*8 if sub < 4 else 8192 + (hd >> 1)*512)) << (16*g)
    return c

def idle_setup():
    E(f'''c_setup:
    v_lshrrev_b32 v{a2}, 2, v{vL}
    v_mul_u32_u24 v{vTr}, 160, v{a2}
    v_and_b32 v{a2}, 3, v{vL}
    v_lshl_add_u32 v{vTr}, v{a2}, 3, v{vTr}
    v_add_u32 v{vTr}, 102400, v{vTr}
    ''')
    srd(SWS, pWS, WS_SIZE); srd(SW, pWO, WBYTES)
    E(f'''v_mul_u32_u24 v{a1}, 6554, v{vL}
    v_lshrrev_b32 v{a1}, 16, v{a1}
    v_mul_u32_u24 v{vW40}, 1120, v{a1}
    s_mul_i32 s{t0}, s{sJ}, 160
    v_add3_u32 v{vW40}, v{vW40}, v{vL16}, s{t0}
    s_lshl_b32 s{t1}, s{sTB}, 6
    s_lshl_b32 s{t2}, s{sNT}, 4
    s_add_u32 s{t1}, s{t1}, s{t2}
    s_mul_i32 s{t1}, s{t1}, 1280
    s_add_u32 s{t0}, s{t0}, s{t1}
    s_xor_b32 s{sKT}, s{sJ}, s{sKH}
    s_and_b32 s{sKT}, s{sKT}, 1''')
    if 'noswap' in OPT: E(f's_mov_b32 s{sKT}, s{sKH}')
    E(f's_mul_i32 s{t1}, s{sKH}, 192')
    for i in range(3):
        E(f'''v_add_u32 v{a1}, s{t1}, v{vL}
        v_mul_u32_u24 v{a2}, 3277, v{a1}
        v_lshrrev_b32 v{a2}, 16, v{a2}
        v_mul_u32_u24 v{a3}, 1120, v{a2}
        v_lshl_add_u32 v{a3}, v{a1}, 3, v{a3}
        v_add_u32 v{vEo+i}, s{t0}, v{a3}
        v_mul_u32_u24 v{a3}, 272, v{a1}
        v_mul_u32_u24 v{a2}, 5424, v{a2}
        v_sub_u32 v{vEl+i}, v{a3}, v{a2}
        s_add_u32 s{t1}, s{t1}, 64''')
    E(f'''s_mul_i32 s{sKR}, s{sTB}, 81920
    s_mul_i32 s{t0}, s{sNT}, 20480
    s_add_u32 s{sKR}, s{sKR}, s{t0}
    s_mul_i32 s{t0}, s{sJ}, 2560
    s_add_u32 s{sKR}, s{sKR}, s{t0}
    s_add_u32 s{sKR}, s{sKR}, {WS_O}
    s_mov_b32 s{sMODE}, 0
    s_setpc_b64 {sr(sRET,2)}''')

def worker_setup():
    E(f'''v_bfe_u32 v{vXa}, v{vL}, 3, 1
    v_lshlrev_b32 v{vXa}, 10, v{vXa}
    v_and_b32 v{a1}, 7, v{vL}
    v_lshl_add_u32 v{vXa}, v{a1}, 7, v{vXa}
    v_bfe_u32 v{a1}, v{vL}, 1, 3
    v_lshrrev_b32 v{a2}, 4, v{vL}
    v_xor_b32 v{a1}, v{a1}, v{a2}
    v_lshl_add_u32 v{vXa}, v{a1}, 4, v{vXa}
    s_lshl_b32 s{t0}, s{sNT}, 11
    v_add_u32 v{vXa}, s{t0}, v{vXa}
    v_xor_b32 v{vXb}, 64, v{vXa}
''')
    attn_consts()
    E(f'''s_lshl_b32 s{t0}, s{sNT}, 11
    s_add_u32 s{t0}, s{t0}, {L_QF}
    v_and_b32 v{a2}, 15, v{vL}
    v_lshl_add_u32 v{a1}, v{a2}, 4, s{t0}
    v_add_u32 v{vQw+5}, s{t0}, v{vL16}
    v_and_b32 v{a3}, 48, v{vL}
    v_bfe_u32 v{vOa}, v{vL}, 4, 1
    v_lshlrev_b32 v{vOa}, 9, v{vOa}
    v_lshl_add_u32 v{vOa}, v{a2}, 4, v{vOa}
    v_lshrrev_b32 v{a2}, 5, v{vL}
    v_lshl_add_u32 v{vOa}, v{a2}, 8, v{vOa}''')
    for i in range(5):
        c = qtab(i)
        E(f'''s_mov_b32 s50, {c & 0xffffffff:#x}
        s_mov_b32 s51, {c >> 32:#x}
        v_lshrrev_b64 {r(a4,2)}, v{a3}, s[50:51]
        v_and_b32 v{a4}, 0xffff, v{a4}
        v_add_u32 v{vQw+i}, v{a4}, v{a1}''')
    E(f's_mov_b32 s{t0}, {WS_G}\ns_mov_b32 s{t1}, {(1 << 32)//1280 + 1}')
    for i in range(3): E(f'v_mul_hi_u32 v{a0}, v{vEo+i}, s{t1}\nv_lshl_add_u32 v{vGa+i}, v{a0}, 2, s{t0}')
    tail_setup()

UNROLL = 'roll' not in OPT
def period(t, it=None):
    cur, nxt = P[t & 1], P[(t+1) & 1]
    vp, vc = VV[(t+1) & 1], VV[t & 1]
    km = KM[(t+1) & 1]
    kt, abid = [(KX, 1), (KY, 0), (KY, 1), (KX, 0)][t]
    roll = it is None
    ob = 0 if roll else (it % 5)*BLK
    last = it == 15
    e = lambda a, b: [E(f'v_exp_f32 v{cur+i}, v{cur+i}') for i in range(a, b)]
    if roll and t == 0: [E(f'v_exp_f32 v{nxt+i}, v{nxt+i}') for i in range(29, 32)]
    if it == 0 and t == 0: E('a_in:')
    e(0, 2)
    if not (it == 0 and t == 0): E(smf(OB, vp+4, nxt+24))
    if roll and t == 0: E('a_in:')
    tv, tk = t+1, t+2
    E('s_waitcnt lgkmcnt(0)')
    if not (last and t == 3):
        E(f'''s_mov_b64 exec, {sr(sMASK,2)}
        ds_read_b128 {r(vp,4)}, v{ADDR} offset:{ob+(tv>>2)*BLK+off_v(tv&3,0)}
        ds_read_b128 {r(vp+4,4)}, v{ADDR} offset:{ob+(tv>>2)*BLK+off_v(tv&3,1)}
        s_mov_b64 exec, -1''')
    e(2, 6)
    qk = not (last and t == 3)
    if qk: E(f'v_mfma_f32_32x32x4_2b_bf16 {r(nxt,32)}, {r(kt,2)}, {r(QT,2)}, {r(NEGM,32)} cbsz:1 abid:{abid}')
    e(6, 14)
    E(smf(OA, vc, cur))
    if STAMPS and (not STSET or 'L' in STSET.split(',')):
        if t == 0: E(f's_memtime s[100:101]\ns_add_u32 m0, s{sIT}, 44' if roll else f's_memtime s[100:101]')
        if t == 1: E(f'v_writelane_b32 v254, s100, {"m0" if roll else 44+it}')
    if not roll and t == 2 and it == 1: E('s_barrier')
    if not roll and t == 2 and it == IT_K: flag_wait('a_fk', F_K, issued=True, inline=True)
    if not (last and t >= 2):
        E(f'ds_read_b128 {r(KM[tk&1],4)}, v{ADDR} offset:{ob+(tk>>2)*BLK+(tk&3)*512}')
    if t == 0: E(f'ds_read_b64 {r(KY,2)}, v{ADDR} offset:{ob+OFF_KT+8}')
    if t == 2 and not last: E(f'ds_read_b64 {r(KX,2)}, v{ADDR} offset:{ob+BLK+OFF_KT}')
    if not roll and t == 1 and it == IT_K: flag_read(F_K)
    if not roll and t == 0 and it == IT_D: E(f'ds_read_b32 v{a7}, v{vF} offset:{T_KEY+4}')
    if not roll and t == 0 and it in (IT_K-1, IT_D): E(f'ds_write_b32 v{a3}, v{a2} offset:{F_D if it == IT_D else F_D1}')
    if it == 12 and t < 3:
        E(f'''buffer_load_dwordx2 {r(XR+2*t,2)}, v{vEo+t}, {sr(SX,4)}, 0 offen
        buffer_load_dword v{vG+t}, v{vGa+t}, {sr(SWS,4)}, 0 offen sc1''')
    if t == 3 and roll: E(f'v_add_u32 v{ADDR}, {BLK}, v{ADDR}')
    if t == 3 and not roll and it % 5 == 4: E(f'v_add_u32 v{ADDR}, {5*BLK}, v{ADDR}')
    e(14, 18)
    E(smf(OA, vc+4, cur+8))
    e(18, 22)
    if qk: E(f'v_mfma_f32_32x32x16_bf16 {r(nxt,16)}, {r(km,4)}, {r(QA,4)}, {r(nxt,16)}')
    e(22, 26)
    E(smf(OB, vc, cur+16))
    if last and t == 3: E('s_barrier')
    if roll and t == 1: E(f's_bitcmp1_b32 s{sHOOK}, s{sIT}\ns_cbranch_scc1 a_hook\na_hookret:')
    if roll and t == 3: E(f's_add_u32 s{sIT}, s{sIT}, 1\ns_cmp_lt_u32 s{sIT}, 16')
    e(26, 29)
    if qk: E(f'v_mfma_f32_32x32x16_bf16 {r(nxt+16,16)}, {r(km,4)}, {r(QB,4)}, {r(nxt+16,16)}')
    if roll and t == 3: E('s_cbranch_scc1 a_loop')
    e(29, 32)
def v_first():
    E(f'''s_mov_b64 exec, {sr(sMASK,2)}
    ds_read_b128 {r(VV[0],4)}, v{ADDR} offset:{off_v(0,0)}
    ds_read_b128 {r(VV[0]+4,4)}, v{ADDR} offset:{off_v(0,1)}
    s_mov_b64 exec, -1
    ds_read_b128 {r(KM[1],4)}, v{ADDR} offset:512''')
def bits(*l): return sum(1 << i for i in l)
IT_K = 7; IT_D, IT_W = 10, int(env('ITW', '14'))

def front():
    E(f'''v_lshrrev_b32 v1, 6, v0
    v_and_b32 v{vL}, 63, v0
    v_readfirstlane_b32 s{sW}, v1
    s_and_b32 s{sTB}, s2, 7
    s_lshl_b32 s{sTB}, s{sTB}, 2
    s_lshr_b32 s{sROT}, s2, 6
    s_or_b32 s{sTB}, s{sTB}, s{sROT}
    s_bfe_u32 s{sJ}, s2, 0x30003
    s_lshr_b32 s{sNP}, s{sJ}, 1
    s_and_b32 s{sNT}, s{sW}, 3
    s_lshr_b32 s{sKH}, s{sW}, 2
    s_add_u32 s{sROT}, s{sROT}, s{sJ}
    s_mul_i32 s{t1}, s{sROT}, 52
    s_lshr_b32 s{t1}, s{t1}, 8
    s_mul_i32 s{t1}, s{t1}, 5
    s_sub_u32 s{sROT}, s{sROT}, s{t1}
    v_lshlrev_b32 v{vL16}, 4, v{vL}
    v_and_b32 v{vF}, 3, v0
    v_lshlrev_b32 v{vF}, 2, v{vF}
    v_add_u32 v{vC}, {L_CNT}, v{vF}
    v_mov_b32 v{a1}, 0
    ds_write_b32 v{vC}, v{a1}
    v_lshrrev_b32 v{a0}, 3, v{vL}
    v_mul_u32_u24 v{vXa}, 1280, v{a0}
    v_lshrrev_b32 v{a0}, 4, v{vL}
    v_xor_b32 v{a0}, v{a0}, v{vL}
    v_and_b32 v{a0}, 7, v{a0}
    v_lshl_add_u32 v{vXa}, v{a0}, 4, v{vXa}
    s_mul_i32 s{t2}, s{sTB}, 81920
    s_cmp_lt_u32 s{sW}, 5
    s_cbranch_scc0 f_w567''')
    E(f'''s_setprio 3
    v_xor_b32 v{vXb}, 64, v{vXa}
    ''')
    mod5(t3, f's{sROT}', f's{sW}')
    E(f'''s_mul_i32 s{t6}, s{sNP}, 20480
    s_add_u32 s{t6}, s{t6}, s{t2}
    s_lshl_b32 s{t1}, s{t3}, 8
    s_add_u32 s{t6}, s{t6}, s{t1}
    s_lshl_b32 s{t4}, s{sNP}, 11
    s_lshl_b32 s{t1}, s{sW}, 14
    s_add_u32 s{t4}, s{t4}, s{t1}
    s_mul_i32 s{t2}, s{sW}, 3072
    s_add_u32 s{t2}, s{t2}, {L_PART}
    s_waitcnt lgkmcnt(0)''')
    start_stamp()
    def gx():
        srd(SX, pX, XBYTES)
        E(f's_mov_b32 m0, s{t4}\ns_add_u32 s{t1}, s{t6}, 128'); dma(vXa, SX, f's{t6}', 0, 'nt'*('x' in NT))
        E(f's_add_u32 m0, s{t4}, 8192\ns_add_u32 s{t0}, s{t6}, 10240'); dma(vXa, SX, f's{t1}', 0, 'nt'*('x' in NT))
        E(f's_add_u32 m0, s{t4}, 1024\ns_add_u32 s{t1}, s{t0}, 128'); dma(vXb, SX, f's{t0}', 0, 'nt'*('x' in NT))
        E(f's_add_u32 m0, s{t4}, 9216\ns_nop 0'); dma(vXb, SX, f's{t1}', 0, 'nt'*('x' in NT))
    def gk():
        E(f's_bitcmp1_b32 s{sJ}, 0\ns_cselect_b32 s{pWK}, s{pWV}, s{pWK}\ns_cselect_b32 s{pWK+1}, s{pWV+1}, s{pWK+1}')
        srd(SE, pWK, 25600)
        E(f'''s_mul_i32 s{t0}, s{t3}, 5120
        s_mul_i32 s{t1}, s{sW}, 5120
        s_add_u32 m0, s{t1}, {L_WKV}
        s_add_u32 s{t5}, s{t0}, 4096''')
        for i in range(4): dma(vL16, SE, f's{t0}', 1024*i)
        E(f's_add_u32 m0, s{t1}, {L_WKV+4096}\ns_nop 0'); dma(vL16, SE, f's{t5}')
        E(f's_bitcmp1_b32 s{sJ}, 0\ns_cbranch_scc1 f_norg')
        srd(SF, pWR, 1280); srd(SD, pGW, 1280)
        E(f's_lshl_b32 s{t0}, s{t3}, 8\ns_mov_b32 m0, s{t2}\ns_mov_b64 exec, 0xffff')
        dma(vL16, SF, f's{t0}')
        E(f's_add_u32 m0, s{t2}, 256\ns_nop 0'); dma(vL16, SD, f's{t0}')
        E('s_mov_b64 exec, -1\nf_norg:')
    stamp(18)
    for i, c in enumerate(ORDER): {'x': gx, 'k': gk, '|': lambda: E('s_barrier')}[c](); stamp(19+i)
    RG, XF, CA = 32, 48, 96
    E(f'''v_bfe_u32 v{a0}, v{vL}, 3, 1
    v_lshlrev_b32 v{a0}, 10, v{a0}
    v_and_b32 v{a1}, 7, v{vL}
    v_lshl_add_u32 v{a0}, v{a1}, 7, v{a0}
    v_bfe_u32 v{a1}, v{vL}, 1, 3
    v_lshrrev_b32 v{a2}, 4, v{vL}
    v_xor_b32 v{a1}, v{a1}, v{a2}
    v_lshl_add_u32 v{a0}, v{a1}, 4, v{a0}
    v_add_u32 v{a0}, s{t4}, v{a0}
    v_xor_b32 v{a1}, 64, v{a0}
    v_and_b32 v{a4}, 1, v{vL}
    v_lshlrev_b32 v{a4}, 8, v{a4}
    v_lshl_add_u32 v{a4}, v{a2}, 4, v{a4}
    v_add_u32 v{a4}, s{t2}, v{a4}
    v_lshlrev_b32 v{a2}, 3, v{a2}
    v_bfe_u32 v{a3}, v{vL}, 2, 2
    v_add_u32 v{a2}, v{a2}, v{a3}
    v_mul_u32_u24 v{a2}, 40, v{a2}
    v_and_b32 v{a3}, 3, v{vL}
    v_lshl_add_u32 v{a2}, v{a3}, 3, v{a2}
    s_mul_i32 s{t0}, s{sW}, 5120
    s_add_u32 s{t0}, s{t0}, {L_WKV}
    v_add_u32 v{a2}, s{t0}, v{a2}
    v_add_u32 v{a3}, s{t2}, v{vL16}
    v_mov_b32 v{a6}, 1''')
    stamp(2)
    E('s_waitcnt vmcnt(0)')
    stamp(3)
    for kk in range(4):
        E(f'ds_read_b128 {r(XF+4*kk,4)}, v{a1 if kk & 1 else a0} offset:{(kk>>1)*8192}')
        for e in range(2):
            for s in range(2):
                E(f'ds_read_b64_tr_b16 {r(8*kk+4*e+2*s,2)}, v{a2} offset:{kk*1280 + s*160 + e*8}')
    E(f's_bitcmp1_b32 s{sJ}, 0\ns_cbranch_scc1 f_mv')
    for kk in range(4): E(f'ds_read_b128 {r(RG+4*kk,4)}, v{a4} offset:{64*kk}')
    for kk in range(4):
        E(f's_waitcnt lgkmcnt({min(15, 5*(3-kk)+4)})')
        for e in range(2): mf16(CA+4*e, 8*kk+4*e, XF+4*kk, None if kk == 0 else CA+4*e)
    E('s_waitcnt lgkmcnt(0)')
    for kk in range(4): mf16(CA+8, RG+4*kk, XF+4*kk, None if kk == 0 else CA+8)
    E('s_branch f_md\nf_mv:')
    for kk in range(4):
        E(f's_waitcnt lgkmcnt({5*(3-kk)})')
        for e in range(2): mf16(CA+4*e, XF+4*kk, 8*kk+4*e, None if kk == 0 else CA+4*e)
    E(f'''s_nop 4
    f_md:
    s_nop 2
    ds_write_b128 v{a3}, {r(CA,4)}
    ds_write_b128 v{a3}, {r(CA+4,4)} offset:1024
    s_mov_b64 exec, 0xffff
    s_nop 0
    ds_write_b128 v{a3}, {r(CA+8,4)} offset:2048
    s_mov_b64 exec, 1
    ds_add_u32 v{vC}, v{a6}
    s_mov_b64 exec, -1
    s_setprio {env('WPRIO', '3')}''')
    stamp(4)
    E(f's_call_b64 {sr(sRET,2)}, c_setup\ns_cmp_eq_u32 s{sW}, 4\ns_cbranch_scc1 f_w4')
    worker_setup()

def front2():
    E(f'''f_w567:
    s_cmp_eq_u32 s{sW}, 7
    s_cbranch_scc1 f_w7
    s_and_b32 s{t3}, s{sW}, 1
    s_lshl_b32 s{sXP+6}, s{t3}, 10
    s_lshl_b32 s{t0}, s{t3}, 6
    v_xor_b32 v{vWo}, s{t0}, v{vXa}
    v_add_u32 v{a0}, s{t0}, v{vL}
    s_mul_i32 s{t1}, s{sJ}, 160''')
    for i in range(5):
        E(f'''v_mul_u32_u24 v{a1}, 6554, v{a0}
        v_lshrrev_b32 v{a1}, 16, v{a1}
        v_and_b32 v{a2}, 35, v{a1}
        v_bfe_u32 v{a3}, v{a1}, 2, 2
        v_lshl_add_u32 v{a2}, v{a3}, 3, v{a2}
        v_bfe_u32 v{a3}, v{a1}, 4, 1
        v_lshl_add_u32 v{a2}, v{a3}, 2, v{a2}
        v_lshlrev_b32 v{a2}, 3, v{a2}
        v_sub_u32 v{a2}, v{a2}, v{a1}
        v_mul_u32_u24 v{a2}, 160, v{a2}
        v_lshl_add_u32 v{a2}, v{a0}, 4, v{a2}
        v_add_u32 v{WP+i}, s{t1}, v{a2}
        v_add_u32 v{a0}, 128, v{a0}''')
    for i in range(3):
        E(f'''s_add_u32 s{t0}, s{sNP}, {i+1}
        s_and_b32 s{t0}, s{t0}, 3
        s_lshl_b32 s{t0}, s{t0}, 1
        s_add_u32 s{t0}, s{t0}, s{t3}
        s_lshl_b32 s{sXP+3+i}, s{t0}, 10
        s_mul_i32 s{t0}, s{t0}, 10240
        s_add_u32 s{sXP+i}, s{t0}, s{t2}''')
    E('s_waitcnt lgkmcnt(0)')
    start_stamp()
    srd(SX, pX, XBYTES); srd(SW, pWQ, WBYTES)
    E(f's_setprio {env("LPRIO", "2")}\ns_barrier')
    E(f's_lshl_b32 s{sXP+7}, 4, s{t3}\nv_mov_b32 v{a6}, 1')
    def sig(n, i):
        E(f's_waitcnt vmcnt({n})\ns_mov_b32 exec_lo, s{sXP+7}\ns_mov_b32 exec_hi, 0\nds_add_u32 v{vC}, v{a6}\ns_mov_b64 exec, -1')
        stamp(8+i)
    ld_issue(0); stamp(2)
    if 'nohold' not in OPT: ctl_wait('l_h', 1, 6)
    ld_issue(1); stamp(3)
    if 'nohold' in OPT: ctl_wait('l_a', 1, 5)
    sig(16, 0)
    ld_issue(2); stamp(4); sig(16, 1)
    ctl_wait('l_b', 2, 4, 1)
    ld_issue(3); stamp(5); sig(16, 2)
    ctl_wait('l_c', 2, 8, 1)
    ld_issue(4, (lambda: sig(16, 91)) if 'nofine' not in OPT else None); stamp(6); sig(16, 3); sig(5, 4); sig(0, 5)
    E(f's_call_b64 {sr(sRET,2)}, c_setup\ns_branch s_start')
    E(f'''f_w7:
    v_mov_b64 v[0:1], 0
    v_mov_b64 v[2:3], 0
    s_waitcnt lgkmcnt(0)''')
    start_stamp()
    srd(SWS, pWS, WS_SIZE); srd(SD, pDBG, 256); srd(SX, pX, XBYTES)
    E(f'''s_cmp_eq_u32 s2, 0
    s_cbranch_scc0 f_ncl
    v_lshlrev_b32 v{a7}, 7, v{vL}
    s_mov_b32 s{t0}, {WS_FLAG}
    buffer_store_dwordx4 v[0:3], v{a7}, {sr(SWS,4)}, s{t0} offen sc1
    f_ncl:
    s_mul_i32 s{t0}, s2, 320
    s_add_u32 s{t0}, s{t0}, {WS_Z}
    s_mov_b64 exec, 0xfffff
    buffer_store_dwordx4 v[0:3], v{vL16}, {sr(SWS,4)}, s{t0} offen sc1
    s_mov_b64 exec, -1
    s_setprio 3
    s_cmp_eq_u32 s2, 0
    s_cbranch_scc0 f_ngo
    v_mov_b32 v4, 1
    s_waitcnt vmcnt(0)
    s_mov_b64 exec, 1
    buffer_store_dword v4, v0, {sr(SD,4)}, 0 offen sc1
    s_mov_b64 exec, -1
    f_ngo:
    s_barrier
    s_call_b64 {sr(sRET,2)}, c_setup''')
    E(f'''s_setprio 3
    v_mov_b32 v0, 0
    v_add_u32 v{a0}, {L_PART}, v{vL16}
    s_lshr_b32 s{t3}, s{sTB}, 1
    s_mul_i32 s{t3}, s{t3}, 10240
    s_lshl_b32 s{t4}, s{sTB}, 1
    s_lshr_b32 s{t5}, s{sNP}, 1
    s_add_u32 s{t4}, s{t4}, s{t5}
    s_and_b32 s{t4}, s{t4}, 3
    s_and_b32 s{t5}, s{sNP}, 1
    v_and_b32 v{a4}, 15, v{vL}
    v_bfe_u32 v{a5}, v{vL}, 4, 1
    v_lshrrev_b32 v{a6}, 5, v{vL}
    s_bitcmp1_b32 s{sJ}, 0
    s_cbranch_scc1 f_av
    v_add_u32 v{a1}, {L_PART+1792}, v{vL16}
    v_mul_u32_u24 v{a2}, 5120, v{a5}
    v_lshl_add_u32 v{a2}, v{a4}, 4, v{a2}
    v_lshl_add_u32 v{a2}, v{a6}, 3, v{a2}
    s_lshl_b32 s{t0}, s{t4}, 9
    s_lshl_b32 s{t1}, s{t5}, 8
    s_add_u32 s{t0}, s{t0}, s{t1}
    v_add_u32 v{a2}, s{t0}, v{a2}
    s_and_b32 s{t0}, s{t4}, 1
    s_mul_i32 s{t0}, s{t0}, 5120
    s_add_u32 s{t0}, s{t0}, s{t1}
    s_lshr_b32 s{t1}, s{t4}, 1
    s_lshl_b32 s{t1}, s{t1}, 3
    s_add_u32 s{t0}, s{t0}, s{t1}
    s_add_u32 s{t0}, s{t0}, {OFF_KT}
    v_add_u32 v{a3}, s{t0}, v{vL16}
    s_mov_b32 s{t2}, {fbits(QSCALE)}
    s_branch f_ae
    f_av:
    v_lshrrev_b32 v{a3}, 2, v{a4}
    v_lshlrev_b32 v{a1}, 8, v{a3}
    v_and_b32 v8, 3, v{vL}
    v_lshl_add_u32 v{a1}, v8, 4, v{a1}
    v_add_u32 v{a1}, {L_PART+1024+192}, v{a1}
    v_mul_u32_u24 v{a2}, 5120, v{a6}
    v_lshl_add_u32 v{a2}, v{a4}, 4, v{a2}
    v_lshl_add_u32 v{a2}, v{a5}, 3, v{a2}
    s_lshl_b32 s{t0}, s{t4}, 1
    s_add_u32 s{t0}, s{t0}, s{t5}
    s_mul_i32 s{t0}, s{t0}, 320
    s_add_u32 s{t0}, s{t0}, 2048
    v_add_u32 v{a2}, s{t0}, v{a2}
    v_lshrrev_b32 v9, 1, v{a3}
    v_mul_u32_u24 v9, 5120, v9
    v_lshl_add_u32 v9, v8, 4, v9
    v_and_b32 v{a3}, 1, v{a3}
    v_lshl_add_u32 v{a3}, v{a3}, 3, v9
    s_add_u32 s{t0}, s{t0}, 256
    v_add_u32 v{a3}, s{t0}, v{a3}
    s_mov_b32 s{t2}, 1.0
    f_ae:''')
    stamp(2)
    E(f'''s_load_dword s{sLOC}, {sr(pDBG,2)}, 0
    s_waitcnt lgkmcnt(0)
    v_mov_b32 v{PL}, s{sLOC}
    s_cmp_lg_u32 s{sLOC}, 0
    s_cbranch_scc1 f_go1
    buffer_load_dword v{PL}, v0, {sr(SD,4)}, 0 offen sc1
    f_go1:''')
    stamp(10)
    ctl_wait('f_c', 1, 5)
    stamp(3)
    for q in range(5):
        E(f'ds_read_b128 {r(8+8*q,4)}, v{a0} offset:{3072*q}\nds_read_b128 {r(12+8*q,4)}, v{a1} offset:{3072*q}')
    for q in range(1, 5):
        E(f's_waitcnt lgkmcnt({2*(4-q)})')
        for h in range(4): E(f'v_pk_add_f32 {r(8+2*h,2)}, {r(8+2*h,2)}, {r(8+8*q+2*h,2)}')
    for h in range(8): E(f'v_mul_f32 v{24+h}, s{t2}, v{8+h}')
    E(f'''v_cvt_pk_bf16_f32 v16, v24, v25
    v_cvt_pk_bf16_f32 v17, v26, v27
    v_cvt_pk_bf16_f32 v18, v28, v29
    v_cvt_pk_bf16_f32 v19, v30, v31
    v_min_u32 v16, -2, v16
    v_min_u32 v17, -2, v17
    buffer_store_dwordx2 v[16:17], v{a2}, {sr(SWS,4)}, s{t3} offen sc1
    s_mov_b64 exec, 0xffff
    buffer_store_dwordx2 v[18:19], v{a3}, {sr(SWS,4)}, s{t3} offen sc1
    s_mov_b64 exec, -1
    s_mov_b32 s{sKEY}, 0
    s_bitcmp1_b32 s{sJ}, 0
    s_cbranch_scc1 f_nk
    v_mul_f32 v13, {fbits(-LOG2E)}, v13
    v_exp_f32 v13, v13
    s_lshl_b32 s{t0}, s{sTB}, 6
    s_lshl_b32 s{t1}, s{sNP}, 4
    s_add_u32 s{t0}, s{t0}, s{t1}
    v_add_f32 v13, 1.0, v13
    v_rcp_f32 v13, v13
    v_add_u32 v20, s{t0}, v{a4}
    v_lshlrev_b32 v21, 2, v20
    s_mov_b32 s{t0}, {WS_G}
    s_mov_b32 exec_lo, 0xffff0000
    s_mov_b32 exec_hi, 0
    buffer_store_dword v13, v21, {sr(SWS,4)}, s{t0} offen sc1
    s_mov_b64 exec, -1
    v_sub_u32 v20, 2047, v20
    v_ashrrev_i32 v22, 31, v12
    v_or_b32 v22, 0x80000000, v22
    v_xor_b32 v22, v22, v12
    v_and_b32 v22, 0xffff8000, v22
    v_lshl_or_b32 v22, v20, 4, v22''')
    for sh in (1, 2, 4, 8): E(f's_nop 1\nv_max_u32_dpp v22, v22, v22 row_shr:{sh}')
    E(f'''s_nop 1
    v_readlane_b32 s{sKEY}, v22, 31
    s_nop 1
    f_nk:
    v_mov_b32 v{a6}, 1
    s_mov_b64 exec, 1
    ds_add_u32 v{vC}, v{a6}
    s_mov_b64 exec, -1
    s_getreg_b32 s{t0}, hwreg(HW_REG_XCC_ID, 0, 3)
    s_or_b32 s{t0}, s{t0}, 8
    s_or_b32 s{sKEY}, s{sKEY}, s{t0}
    s_and_b32 s{t0}, s2, 63
    s_lshl_b32 s{t0}, s{t0}, 7
    s_lshr_b32 s{t1}, s2, 6
    s_lshl_b32 s{t1}, s{t1}, 2
    s_add_u32 s{t0}, s{t0}, s{t1}
    s_add_u32 s{t3}, s{t0}, {WS_FLAG}''')
    stamp(4)
    spin('g_p', lambda: E(f'buffer_load_dword v{PL}, v0, {sr(SD,4)}, 0 offen sc1'),
         lambda: E(f's_waitcnt vmcnt(0)\nv_readfirstlane_b32 s{t1}, v{PL}\ns_nop 0\ns_cmp_lg_u32 s{t1}, 0'))
    if 'vflag' in OPT:
        E(f'''v_mov_b32 v{a4}, s{sKEY}
        s_waitcnt vmcnt(0)
        s_mov_b64 exec, 1
        buffer_store_dword v{a4}, v0, {sr(SWS,4)}, s{t3} offen sc1
        s_mov_b64 exec, -1''')
    else:
        E(f's_waitcnt vmcnt(0)\ns_atomic_or s{sKEY}, {sr(pWS,2)}, s{t3}')
    stamp(5)
    E(f'''f_w4:
    s_setprio 1
    v_and_b32 v{a6}, 7, v{vL}
    v_lshlrev_b32 v{a6}, 10, v{a6}
    s_and_b32 s{t0}, s2, 7
    s_lshl_b32 s{t1}, s{t0}, 7
    v_add_u32 v{a6}, s{t1}, v{a6}
    s_mov_b32 s{t3}, {WS_FLAG}
    s_and_b32 s{t4}, s{sW}, 1
    s_mul_i32 s{t4}, s{t4}, 10240
    s_mul_i32 s{t5}, s{t0}, 20480
    s_add_u32 s{t5}, s{t5}, s{t4}''')
    ctl_wait('f_x', 2, 4*PW, sleep=2)
    stamp(9)
    E('s_setprio 3')
    spin('f_ps', FL, FC, first_issued=False, sleep=4)
    stamp(6)
    for i in range(10):
        if i % 4 == 0: E(f's_add_u32 m0, s{t4}, {1024*i}\ns_add_u32 s{t0}, s{t5}, {1024*i}')
        dma(vL16, SWS, f's{t0}', 1024*(i % 4), 'sc1')
    E('s_waitcnt vmcnt(0)')
    stamp(7)

FL = lambda: E(f'buffer_load_dwordx4 {r(PL,4)}, v{a6}, {sr(SWS,4)}, s{t3} offen sc1')
def FC():
    E(f'''s_waitcnt vmcnt(0)
    v_min3_u32 v{a5}, v{PL}, v{PL+1}, v{PL+2}
    v_min_u32 v{a5}, v{a5}, v{PL+3}
    v_cmp_eq_u32 vcc, 0, v{a5}
    s_nop 1
    s_cmp_eq_u64 vcc, 0''')

def qproj():
    XQ = [0, 16]; AFB = [32, 96]; AQ = 172
    def rd(k, mt):
        p, ks = divmod(k, 4)
        v, base = (a6, 0) if p == 2 else (vTr, WSLOT[p] - 102400)
        for s in range(2): E(f'ds_read_b64_tr_b16 {r(AFB[k & 1]+4*mt+2*s,2)}, v{v} offset:{base + ks*5120 + s*2560 + mt*32}')
    def mm(k, mt): mf16(AQ+4*mt, AFB[k & 1]+4*mt, XQ[(k >> 2) & 1]+4*(k & 3), None if k == 0 else AQ+4*mt)
    E(f'v_add_u32 v{a6}, {u32(WSLOT[2]-102400)}, v{vTr}\nv_mov_b32 v{a7}, 1')
    stamp(5)
    ctl_wait('q_0', 12, 1)
    sync = {4: 2, 8: 3, 12: 4, 14: 5, 16: 6, 18: 7} if 'nofine' not in OPT else {4: 2, 8: 3, 12: 4, 16: 5, 18: 6}
    for k in range(20):
        p, ks = divmod(k, 4)
        extra = 0
        if k in (4, 8, 12, 16):
            E(f's_mov_b64 exec, 2\nds_add_u32 v{vC}, v{a7}\ns_mov_b64 exec, -1'); extra += 1
        if k in sync:
            ctl_wait(f'q_s{k}', 12, sync[k], pre=True)
        if k in sync or k == 0: stamp(8+p if ks == 0 else (13 if k == 18 else 99))
        if ks == 0:
            if p == 4: E(f'v_add_u32 v{vXa}, 65536, v{vXa}\nv_add_u32 v{vXb}, 65536, v{vXb}')
            for q in range(4): E(f'ds_read_b128 {r(XQ[p & 1]+4*q,4)}, v{vXb if q & 1 else vXa} offset:{(p & 3)*16384 + (q >> 1)*8192}')
            extra += 4
        if k+1 in sync: E(f'ds_read_b32 v{PL+3}, v{vC}'); extra += 1
        for mt in range(5):
            if 'oldw' in OPT:
                rd(k, mt)
                if k: E(f's_waitcnt lgkmcnt({10 if (mt == 4 and k+1 in sync) else 10+extra})'); mm(k-1, mt)
            else:
                if k: E(f's_waitcnt lgkmcnt({8 if (mt == 4 and k+1 in sync) else 8+extra})')
                rd(k, mt)
                if k: mm(k-1, mt)
    for mt in range(5): E(f's_waitcnt lgkmcnt({2*(4-mt)})'); mm(19, mt)
    E(f'''v_mov_b32 v{a4}, 0x3f80
    v_mov_b32 v{a5}, 0
    s_setprio 2''')
    for i in range(5):
        a = AQ + 4*i
        E(f'v_cvt_pk_bf16_f32 v{a}, v{a}, v{a+1}\nv_cvt_pk_bf16_f32 v{a+1}, v{a+2}, v{a+3}\nds_write_b64 v{vQw+i}, {r(a,2)}')

AP = [0, 40, 80, 160]; XB = [120, 144, 152, 136, 128]; ACC = 232; OS = 172; XF = 40; YT = 232; Y2 = 56
def rdA(p, dst, st_, mt):
    for s in range(2):
        E(f'ds_read_b64_tr_b16 {r(dst+20*st_+4*mt+2*s,2)}, v{a5 if p < 3 else a6} offset:{(p if p < 3 else p-3)*20480 + st_*5120 + s*2560 + mt*32}')
def a_addr():
    E(f"""s_mul_i32 s{t0}, s{sKT}, 10240
    s_add_u32 s{t0}, s{t0}, {u32(T_W - 102400)}
    v_add_u32 v{a5}, s{t0}, v{vTr}
    v_add_u32 v{a6}, 61440, v{a5}""")

def tail_setup():
    srd(SD, pOUT, XBYTES)
    E(f"""s_mul_i32 s{t2}, s{sTB}, 81920
    s_mul_i32 s{t0}, s{sNT}, 20480
    s_add_u32 s{t2}, s{t2}, s{t0}
    s_lshl_b32 s{t0}, s{sKT}, 11
    s_add_u32 s{t2}, s{t2}, s{t0}
    s_add_u32 s{t2}, s{t2}, {WS_O}""")
    for p in range(5):
        mod5(sXP+p, f's{sROT}', p)
        E(f's_lshl_b32 s{sXP+p}, s{sXP+p}, 12\ns_add_u32 s{sXP+p}, s{sXP+p}, s{t2}')

def attention():
    E(f"""ds_read_b64 {r(QT,2)}, v{vQw+5} offset:8192
    ds_read_b128 {r(QA,4)}, v{vQw+5}
    ds_read_b128 {r(QB,4)}, v{vQw+5} offset:1024""")
    stamp(14)
    E('s_waitcnt lgkmcnt(0)\ns_barrier')
    stamp(15)
    E(f"""ds_read_b64 {r(KX,2)}, v{ADDR} offset:{OFF_KT}
    ds_read_b128 {r(KM[0],4)}, v{ADDR}""")
    v_first()
    E(f"""s_waitcnt lgkmcnt(4)
    v_mfma_f32_32x32x4_2b_bf16 {r(P[0],32)}, {r(KX,2)}, {r(QT,2)}, 0 cbsz:1 abid:0""")
    E(f"""s_waitcnt lgkmcnt(3)
    s_nop 15
    s_nop 0
    v_mfma_f32_32x32x16_bf16 {r(P[0],16)}, {r(KM[0],4)}, {r(QA,4)}, {r(P[0],16)}
    v_mfma_f32_32x32x16_bf16 {r(P[0]+16,16)}, {r(KM[0],4)}, {r(QB,4)}, {r(P[0]+16,16)}
    s_nop 10""")
    for b, d in ((0, 32), (16, 33)):
        E(f'v_max3_f32 v{d}, v{b}, v{b+1}, v{b+2}')
        for i in range(3, 15, 2): E(f'v_max3_f32 v{d}, v{d}, v{b+i}, v{b+i+1}')
        E(f'v_max_f32 v{d}, v{d}, v{b+15}')
    E(f"""s_nop 1
    v_permlane32_swap_b32 v32, v33
    v_max_f32 v32, v32, v33
    v_sub_f32 v32, {fbits(-XSHIFT)}, v32
    v_lshrrev_b32 v32, 16, v32
    v_mov_b32 v33, 0
    s_nop 1
    v_mfma_f32_32x32x4_2b_bf16 {r(P[0],32)}, {r(a4,2)}, {r(32,2)}, {r(P[0],32)}
    v_mfma_f32_32x32x4_2b_bf16 {r(NEGM,32)}, {r(a4,2)}, {r(32,2)}, 0
    s_lshl_b32 s{t0}, s{sNT}, 2
    v_mov_b32 v{a2}, -1
    v_mov_b32 v{a3}, s{t0}
    s_nop 15""")
    stamp(16); stamp(40, True)
    if UNROLL:
        for it in range(16):
            for t in range(4): period(t, it)
    else:
        E('v_exp_f32 v0, v0\nv_exp_f32 v1, v1\ns_branch a_in')
        E('.p2align 6\na_loop:')
        for t in range(4): period(t)
    E(f'v_mov_b32 v{a0}, v{OA+8}\nv_readfirstlane_b32 s{sLOC}, v{a7}')
    E(smf(OB, VV[1]+4, P[1]+24))
    stamp(41, True); stamp(25)
    E(f"""s_mov_b32 s{t2}, {fbits(2.0**-100)}
    s_mov_b32 s{t1}, {fbits(2.0**120)}
    s_mov_b32 s{t3}, 0x7f800000""")
    a_addr()
    for s_ in range(2):
        for mt in range(3): rdA(1, AP[1], 0, 3*s_+mt) if 3*s_+mt < 3 else None
    E(f"""v_mov_b32 v{a1}, v{OB+8}
    s_nop 1
    v_permlane32_swap_b32 v{a0}, v{a1}
    v_cmp_nge_f32 vcc, v{a1}, s{t2}
    v_cmp_nle_f32 s[50:51], v{a1}, s{t1}
    v_rcp_f32 v{a1}, v{a1}
    s_nop 0
    v_mov_b32 v{a0}, v{a1}
    s_or_b64 s[50:51], s[50:51], vcc
    s_nop 0
    v_permlane32_swap_b32 v{a0}, v{a1}""")
    for o, sel in ((OA, 'op_sel_hi:[1,0]'), (OB, 'op_sel:[0,1]')):
        for i in range(0, 12, 2): E(f'v_pk_mul_f32 {r(o+i,2)}, {r(o+i,2)}, {r(a0,2)} {sel}')
    E(f'v_maximum3_f32 v{a2}, |v{OA}|, |v{OB}|, |v{OB}|')
    for i in range(1, 12): E(f'v_maximum3_f32 v{a2}, v{a2}, |v{OA+i}|, |v{OB+i}|')
    for i in range(4): E(f'v_cvt_pk_bf16_f32 v{OS+i}, v{OA+2*i}, v{OA+2*i+1}')
    E(f'v_cmp_nlt_f32 vcc, v{a2}, s{t3}')
    for i in range(4): E(f'v_cvt_pk_bf16_f32 v{OS+4+i}, v{OB+2*i}, v{OB+2*i+1}')
    for i in range(2): E(f'v_cvt_pk_bf16_f32 v{OS+8+i}, v{OA+8+2*i}, v{OA+9+2*i}\nv_cvt_pk_bf16_f32 v{OS+10+i}, v{OB+8+2*i}, v{OB+9+2*i}')
    E(f"""v_mov_b32 v{a2}, 0
    s_or_b64 s[50:51], s[50:51], vcc
    s_cbranch_scc1 t_bad
    t_st:
    s_cmp_eq_u32 s{sLOC}, 0
    s_cbranch_scc1 t_far
    buffer_store_dwordx4 {r(OS,4)}, v{vOa}, {sr(SWS,4)}, s{sKR} offen {env('LOCM', '')}
    buffer_store_dwordx4 {r(OS+4,4)}, v{vOa}, {sr(SWS,4)}, s{sKR} offen offset:1024 {env('LOCM', '')}
    s_mov_b32 exec_hi, 0
    buffer_store_dwordx4 {r(OS+8,4)}, v{vL16}, {sr(SWS,4)}, s{sKR} offen offset:2048 {env('LOCM', '')}
    s_mov_b32 exec_hi, -1
    t_nst:
    ds_write_b32 v{a3}, v{a2} offset:{T_BAD}""")
    stamp(27)
    for p in range(NPRE):
        for st_ in range(2):
            for mt in range(5):
                if not (p == 1 and st_ == 0 and mt < 3): rdA(p, AP[p], st_, mt)

def tail():
    E('t_join:')
    stamp(28)
    E('s_setprio 0\ns_waitcnt ' + ('' if 'noack' in OPT else 'vmcnt(0) ') + 'lgkmcnt(0)\ns_barrier')
    stamp(29)
    def oload(p0, p1=5):
        for p in range(p0, p1):
            for s in range(2): E(f'buffer_load_dwordx4 {r(XB[p]+4*s,4)}, v{vL16}, {sr(SWS,4)}, s{sXP+p} offen offset:{1024*s} sc1')
    E(f'ds_read_b32 v{PL}, v{vF} offset:{T_BAD}\nds_read_b32 v{a2}, v{vF} offset:{T_KEY}')
    oload(0, DEPTH)
    E(f"""s_mov_b32 s{t6}, 0
    s_waitcnt lgkmcnt(0)
    v_cmp_ne_u32 vcc, 0, v{PL}
    v_readfirstlane_b32 s{sCB}, v{a2}
    s_lshl_b32 s{t0}, s{sNT}, 4
    s_sub_u32 s{sCB}, s{sCB}, s{t0}
    s_cmp_lg_u64 vcc, 0
    s_cbranch_scc1 a_exact""")
    E(f's_cmp_eq_u32 s{sKH}, 0\ns_cbranch_scc0 t_s0')
    for p in range(NPRE, 4):
        for st_ in range(2):
            for mt in range(5): rdA(p, AP[p], st_, mt)
    for p in range(5):
        b = XB[p]
        E(f"""t_s{p}:
        s_waitcnt vmcnt({2*(min(p+DEPTH, 5)-p-1)})
        v_max3_u32 v{a0}, v{b}, v{b+1}, v{b+2}
        v_max3_u32 v{a1}, v{b+3}, v{b+4}, v{b+5}
        v_max3_u32 v{a0}, v{a0}, v{b+6}, v{b+7}
        v_max_u32 v{a0}, v{a0}, v{a1}
        v_cmp_eq_u32 vcc, -1, v{a0}""")
        E('s_waitcnt lgkmcnt(0)' if p in (1, 4) else 's_nop 0')
        E(f's_cmp_eq_u64 vcc, 0\ns_cbranch_scc0 t_r{p}\nt_c{p}:')
        stamp(30+p)
        if p + DEPTH < 5: oload(p+DEPTH, p+DEPTH+1)
        if p == 4 and env('WB'):
            E(f's_cmp_eq_u32 s{sW}, 0\ns_cbranch_scc0 t_nwb\ns_and_b32 s{t0}, s2, {env("WB")}\ns_cbranch_scc1 t_nwb\nbuffer_wbl2 sc1\nt_nwb:')
        A = AP[p & 3]
        for s_ in range(2):
            for mt in range(5):
                mf16(ACC+4*mt, A+20*s_+4*mt, b+4*s_, None if (p == 0 and s_ == 0) else ACC+4*mt)
                if p == 1: rdA(4, AP[0], s_, mt)
        if p == 2:
            for i in range(3):
                for h in range(2):
                    E(f'v_lshlrev_b32 v{XF+4*i+2*h}, 16, v{XR+2*i+h}\nv_and_b32 v{XF+4*i+2*h+1}, 0xffff0000, v{XR+2*i+h}')
    stamp(35)
    E(f"""s_mul_i32 s{t2}, s{sW}, 5440
    s_add_u32 s{t2}, s{t2}, {T_FX}
    s_mul_i32 s{t0}, s{sNT}, 5440
    s_add_u32 s{t0}, s{t0}, {T_FX}
    v_and_b32 v{a0}, 48, v{vL}
    v_add3_u32 v{a0}, v{a0}, v{vL16}, s{t2}""")
    for mt in range(5): E(f'ds_write_b128 v{a0}, {r(ACC+4*mt,4)} offset:{1088*mt}')
    for i in range(3): E(f'v_add_u32 v{a1+i}, s{t0}, v{vEl+i}')
    E('s_waitcnt lgkmcnt(0)\ns_barrier')
    R0 = 80
    for i in range(3): E(f'ds_read_b128 {r(R0+8*i,4)}, v{a1+i}\nds_read_b128 {r(R0+8*i+4,4)}, v{a1+i} offset:{4*5440}')
    E(f's_cmp_lt_u32 s{sCB}, 16\ns_cbranch_scc1 t_y3\nt_y3ret:')
    for i in range(3):
        if i == 2: E(f's_cmp_eq_u32 s{sKH}, 0\ns_cbranch_scc0 t_fin')
        a = R0 + 8*i
        g = vG + i
        gp, sel = (g, 'op_sel_hi:[1,0,1]') if g % 2 == 0 else (g-1, 'op_sel:[0,1,0]')
        E(f's_waitcnt lgkmcnt({4-2*i})')
        for q in (0, 2): E(f'v_pk_add_f32 {r(a+q,2)}, {r(a+q,2)}, {r(a+4+q,2)}')
        for q in (0, 2): E(f'v_pk_add_f32 {r(a+q,2)}, {r(a+q,2)}, {r(XF+4*i+q,2)} neg_lo:[0,1] neg_hi:[0,1]')
        for q in (0, 2): E(f'v_pk_fma_f32 {r(a+q,2)}, {r(a+q,2)}, {r(gp,2)}, {r(XF+4*i+q,2)} {sel}')
        E(f"""v_cvt_pk_bf16_f32 v{a}, v{a}, v{a+1}
        v_cvt_pk_bf16_f32 v{a+1}, v{a+2}, v{a+3}
        buffer_store_dwordx2 {r(a,2)}, v{vEo+i}, {sr(SD,4)}, 0 offen {env('OUTM', '')}""")
    E('t_fin:')
    stamp(36)
    if STAMPS:
        E(f's_waitcnt vmcnt(0)\nv_writelane_b32 v254, s{t6}, 43'); stamp(37); stamp(42, True)
        E(f"""s_lshl_b32 s96, s2, 3
        s_add_u32 s96, s96, s{sW}
        s_mul_i32 s96, s96, 256
        s_add_u32 s96, s96, 0x700000
        v_lshlrev_b32 v253, 2, v{vL}
        buffer_store_dword v254, v253, {sr(SWS,4)}, s96 offen nt""")
    if EVT:
        E(f'''s_cmp_eq_u32 s{sW}, 0
        s_cbranch_scc0 k_end
        s_mov_b32 s98, 0
        d_w:
        s_memrealtime s[96:97]
        s_waitcnt lgkmcnt(0)
        s_add_u32 s98, s98, 1
        s_cmp_gt_u32 s98, 50000
        s_cbranch_scc1 k_end
        s_sub_u32 s99, s96, s100
        s_cmp_lt_u32 s99, 4000
        s_cbranch_scc1 d_w''')
    E('k_end:\ns_endpgm')
    for p in range(5):
        E(f"""t_r{p}:
        s_add_u32 s{t6}, s{t6}, 1
        s_cmp_gt_u32 s{t6}, {SPINMAX}
        s_cbranch_scc1 t_c{p}
        s_sleep 2""")
        oload(p, min(p+DEPTH, 5))
        E(f's_branch t_s{p}')
    E(f"""t_far:
    buffer_store_dwordx4 {r(OS,4)}, v{vOa}, {sr(SWS,4)}, s{sKR} offen sc1
    buffer_store_dwordx4 {r(OS+4,4)}, v{vOa}, {sr(SWS,4)}, s{sKR} offen offset:1024 sc1
    s_mov_b32 exec_hi, 0
    buffer_store_dwordx4 {r(OS+8,4)}, v{vL16}, {sr(SWS,4)}, s{sKR} offen offset:2048 sc1
    s_mov_b32 exec_hi, -1
    s_branch t_nst""")
    E(f"""t_bad:
    s_cmp_eq_u32 s{sMODE}, 0
    s_cbranch_scc0 t_bad2
    v_mov_b32 v{a2}, 1
    s_branch t_nst
    t_bad2:""")
    for i in range(12): E(f'v_min_u32 v{OS+i}, -2, v{OS+i}')
    E(f"""s_branch t_st
    t_y3:
    s_mul_i32 s{t0}, s{sCB}, 20
    s_mul_i32 s{t1}, s{sKH}, 192
    s_sub_u32 s{t0}, s{t1}, s{t0}""")
    for i in range(3):
        E(f"""v_add_u32 v{a0}, s{t0}, v{vL}
        v_cmp_gt_u32 vcc, 20, v{a0}
        v_and_b32 v{a0}, 31, v{a0}
        v_lshlrev_b32 v{a0}, 4, v{a0}
        ds_read_b128 {r(Y2,4)}, v{a0} offset:{T_Y}
        s_add_u32 s{t0}, s{t0}, 64
        s_waitcnt lgkmcnt(0)""")
        for q in range(4): E(f'v_cndmask_b32 v{Y2+q}, 0, v{Y2+q}, vcc\nv_add_f32 v{XF+4*i+q}, v{XF+4*i+q}, v{Y2+q}')
    E('s_branch t_y3ret')
    for f in SIDE: f()
    if UNROLL: return
    E(f"""a_hook:
    s_cmp_eq_u32 s{sIT}, {IT_D}
    s_cbranch_scc1 a_hd
    s_cmp_eq_u32 s{sIT}, {IT_K}
    s_cbranch_scc1 a_hk
    s_barrier
    s_branch a_hookret
    a_hk:""")
    flag_read(F_K); flag_set(F_D1); flag_wait('a_fk', F_K, issued=True)
    E('s_branch a_hookret\na_hd:')
    flag_set(F_D)
    E('s_branch a_hookret')

def exact():
    E(f"""a_exact:
    s_mov_b32 s{sMODE}, 1
    s_waitcnt vmcnt(0)
    s_barrier
    s_cmp_eq_u32 s{sKH}, 0
    s_cbranch_scc1 x_c""")
    kv_rows('x_r', 0, 8)
    E('s_waitcnt vmcnt(0)\ns_barrier\ns_branch s_s1\nx_c:')
    attn_consts()
    E(f"""v_mov_b32 v{a3}, v{ADDR}
    v_mov_b32 v{a4}, 0xff800000
    v_mov_b32 v{a5}, 0xff800000
    s_mov_b32 s{t0}, 0
    s_setprio 2
    s_barrier
    x_mx:""")
    for t in range(2):
        E(f"""ds_read_b128 {r(KM[0],4)}, v{a3} offset:{t*512}
        ds_read_b128 {r(KM[1],4)}, v{a3} offset:{t*512+1024}
        ds_read_b128 {r(KX,4)}, v{a3} offset:{OFF_KT}
        s_waitcnt lgkmcnt(0)
        v_mfma_f32_32x32x4_2b_bf16 {r(P[0],32)}, {r(KX,2)}, {r(QT,2)}, 0 cbsz:1 abid:{t}
        v_mfma_f32_32x32x4_2b_bf16 {r(P[1],32)}, {r(KY,2)}, {r(QT,2)}, 0 cbsz:1 abid:{t}
        s_nop 15
        s_nop 1""")
        for u in range(2):
            E(f"""v_mfma_f32_32x32x16_bf16 {r(P[u],16)}, {r(KM[u],4)}, {r(QA,4)}, {r(P[u],16)}
            v_mfma_f32_32x32x16_bf16 {r(P[u]+16,16)}, {r(KM[u],4)}, {r(QB,4)}, {r(P[u]+16,16)}""")
        E('s_nop 11')
        for i in range(16): E(f'v_max3_f32 v{a4}, v{a4}, v{i}, v{32+i}\nv_max3_f32 v{a5}, v{a5}, v{16+i}, v{48+i}')
    E(f"""v_add_u32 v{a3}, {BLK}, v{a3}
    s_add_u32 s{t0}, s{t0}, 1
    s_cmp_lt_u32 s{t0}, 16
    s_cbranch_scc1 x_mx
    v_mov_b64 v[0:1], {r(a4,2)}
    ds_read_b64 {r(KX,2)}, v{ADDR} offset:{OFF_KT}
    ds_read_b128 {r(KM[0],4)}, v{ADDR}
    v_permlane32_swap_b32 v0, v{a4}
    v_permlane32_swap_b32 v1, v{a5}
    v_max_f32 v0, v0, v{a4}
    v_max_f32 v1, v1, v{a5}""")
    for i in range(16): E(f'v_sub_f32 v{NEGM+i}, 0, v0\nv_sub_f32 v{NEGM+16+i}, 0, v1')
    v_first()
    E(f"""s_mov_b32 s{sIT}, 0
    s_waitcnt lgkmcnt(0)
    v_mfma_f32_32x32x4_2b_bf16 {r(P[0],32)}, {r(KX,2)}, {r(QT,2)}, {r(NEGM,32)} cbsz:1 abid:0
    s_nop 15
    s_nop 1
    v_mfma_f32_32x32x16_bf16 {r(P[0],16)}, {r(KM[0],4)}, {r(QA,4)}, {r(P[0],16)}
    v_mfma_f32_32x32x16_bf16 {r(P[0]+16,16)}, {r(KM[0],4)}, {r(QB,4)}, {r(P[0]+16,16)}
    s_lshl_b32 s{t0}, s{sNT}, 2
    v_mov_b32 v{a2}, -1
    v_mov_b32 v{a3}, s{t0}
    s_nop 11""")
    if not UNROLL: E('v_exp_f32 v0, v0\nv_exp_f32 v1, v1')
    E('s_branch a_in')

def service():
    F1, F2, H = 0, 20, 36
    def arrive(off):
        E(f"""s_lshr_b32 s{t0}, s2, 2
        s_lshl_b32 s{t0}, s{t0}, 7
        s_add_u32 s{t0}, s{t0}, {WS_Z+off}
        v_mov_b32 v{a1}, 1
        v_mov_b32 v{a2}, 0
        s_waitcnt vmcnt(0)
        s_mov_b64 exec, 1
        buffer_atomic_add v{a1}, v{a2}, {sr(SWS,4)}, s{t0} offen
        s_mov_b64 exec, -1""")
    E(f"""s_start:
    v_lshlrev_b32 v{a6}, 7, v{vL}
    s_mov_b32 s{t3}, {WS_FLAG}""")
    FL()
    stamp(14)
    E('s_setprio 3\ns_barrier')
    stamp(15); stamp(40, True)
    spin('s_g', FL, FC)
    stamp(16)
    kv_rows('s_r1', 1, 4)
    E(f'''v_max3_u32 v{a5}, v{PL}, v{PL+1}, v{PL+2}
    v_max_u32 v{a5}, v{a5}, v{PL+3}
    s_getreg_b32 s{t0}, hwreg(HW_REG_XCC_ID, 0, 3)
    v_xor_b32 v{PL+1}, v{PL}, v{PL+1}
    v_bitop3_b32 v{PL+2}, v{PL}, v{PL+2}, v{PL+3} bitop3:0x7e
    v_xor_b32 v{PL}, s{t0}, v{PL}
    v_or3_b32 v{PL}, v{PL}, v{PL+1}, v{PL+2}
    v_and_b32 v{PL}, 7, v{PL}
    v_cmp_ne_u32 vcc, 0, v{PL}
    s_and_b32 s{t0}, s2, 7
    s_lshl_b32 s{t0}, 0x01010101, s{t0}
    s_or_b32 s{t1}, vcc_lo, vcc_hi
    s_and_b32 s{t1}, s{t1}, s{t0}
    s_cselect_b32 s{sLOC}, 0, {0 if 'nolocal' in OPT else 1}''')
    for sh in ('row_shr:1', 'row_shr:2', 'row_shr:4', 'row_shr:8', 'row_bcast:15 row_mask:0xa', 'row_bcast:31 row_mask:0xc'):
        E(f's_nop 1\nv_max_u32_dpp v{a5}, v{a5}, v{a5} {sh}')
    E(f's_nop 1\nv_readlane_b32 s{sKEY}, v{a5}, 63\ns_waitcnt vmcnt(0)')
    stamp(17)
    E(f"""s_s1:
    s_barrier
    s_setprio {SPRIO}
    s_bfe_u32 s{t0}, s{sKEY}, 0xb0004
    s_sub_u32 s{t0}, 2047, s{t0}
    s_lshl_b32 s{t1}, s{sTB}, 6
    s_sub_u32 s{sCB}, s{t0}, s{t1}
    v_mov_b32 v{a0}, 0
    v_mov_b32 v{a4}, s{sCB}
    v_mov_b32 v{a5}, s{sLOC}
    ds_write_b64 v{a0}, {r(a4,2)} offset:{T_KEY}
    s_cmp_eq_u32 s{sMODE}, 0
    s_cbranch_scc0 s_k""")
    E(f"""s_bitcmp1_b32 s2, 7
    s_cselect_b32 s{pWG}, s{pWU}, s{pWG}
    s_cselect_b32 s{pWG+1}, s{pWU+1}, s{pWG+1}""")
    srd(SF, pWG, FBYTES); srd(SE, pWD, FBYTES)
    E(f"""s_lshl_b32 s{t0}, s2, 2
    s_add_u32 s{t0}, s{t0}, s{sNT}
    s_and_b32 s{t4}, s{t0}, 31
    s_bfe_u32 s{sIT}, s{t0}, 0x40005
    s_mul_i32 s{sIT}, s{sIT}, 216
    s_bfe_u32 s{t0}, s{sKEY}, 0xb0004
    s_sub_u32 s{t0}, 2047, s{t0}
    s_mul_i32 s{t0}, s{t0}, 1280
    s_mul_i32 s{t1}, s{t4}, 40
    s_add_u32 s{t0}, s{t0}, s{t1}
    s_add_u32 s50, s{pX}, s{t0}
    s_addc_u32 s51, s{pX+1}, 0
    s_load_dwordx8 {sr(sXP,8)}, s[50:51], 0
    s_load_dwordx2 {sr(sXP+8,2)}, s[50:51], 32
    s_mul_i32 s{t0}, s{t4}, {20*3456}
    s_add_u32 s{t0}, s{t0}, s{sIT}
    v_lshlrev_b32 v{a7}, 2, v{vL}
    v_lshlrev_b32 v{a6}, 3, v{vL}
    v_lshlrev_b32 v{a3}, 7, v{vL}
    v_mov_b64 {r(PL,2)}, -1
    v_mov_b64 {r(PL+2,2)}, -1""")
    for i in range(10):
        E(f"""buffer_load_dword v{F1+2*i}, v{a7}, {sr(SF,4)}, s{t0} offen {'nt'*('f' in NT)}
        buffer_load_dword v{F1+2*i+1}, v{a7}, {sr(SF,4)}, s{t0} offen offset:3456 {'nt'*('f' in NT)}
        s_add_u32 s{t0}, s{t0}, 6912""")
    E(f"""    s_mov_b32 s{t2}, 0x05040100
    s_mov_b32 s{t3}, 0x07060302
    v_mov_b64 {r(H,2)}, 0
    s_waitcnt vmcnt(0) lgkmcnt(0)""")
    stamp(18)
    for i in range(10):
        E(f"""v_perm_b32 v{a4}, v{F1+2*i+1}, v{F1+2*i}, s{t2}
        v_perm_b32 v{a5}, v{F1+2*i+1}, v{F1+2*i}, s{t3}
        v_dot2c_f32_bf16 v{H}, s{sXP+i}, v{a4}
        v_dot2c_f32_bf16 v{H+1}, s{sXP+i}, v{a5}""")
    E(f"""s_lshr_b32 s{t0}, s2, 7
    s_mul_i32 s{t0}, s{t0}, 6912
    s_add_u32 s{t0}, s{t0}, s{sIT}
    s_add_u32 s{t0}, s{t0}, {WS_Z+Z_H}
    s_mov_b32 exec_hi, 0x3fffff
    buffer_atomic_add_f32 v{H}, v{a7}, {sr(SWS,4)}, s{t0} offen
    buffer_atomic_add_f32 v{H+1}, v{a7}, {sr(SWS,4)}, s{t0} offen offset:3456
    s_mov_b32 exec_hi, -1""")
    kv_rows('s_r2', 4, 8)
    E(f"""s_mov_b32 s{t0}, s{sKR}
    buffer_store_dwordx4 {r(PL,4)}, v{vL16}, {sr(SWS,4)}, s{t0} offen sc1
    buffer_store_dwordx4 {r(PL,4)}, v{vL16}, {sr(SWS,4)}, s{t0} offen offset:1024 sc1
    s_mov_b32 exec_hi, 0
    buffer_store_dwordx4 {r(PL,4)}, v{vL16}, {sr(SWS,4)}, s{t0} offen offset:2048 sc1
    s_mov_b32 exec_hi, -1""")
    arrive(Z_C1)
    E('s_k:')
    flag_set(F_K)
    stamp(19)
    E(f's_cmp_eq_u32 s{sMODE}, 0\ns_cbranch_scc0 s_k2')
    E(f"""s_mul_i32 s{t0}, s2, {8*1280}
    s_mul_i32 s{t1}, s{sNT}, 320
    s_add_u32 s{t0}, s{t0}, s{t1}
    s_add_u32 s{t1}, s{t0}, 5120""")
    for i in range(8):
        E(f'buffer_load_dwordx2 {r(F2+2*i,2)}, v{a6}, {sr(SE,4)}, s{t0+(i>>2)} offen offset:{(i&3)*1280} {"nt"*("f" in NT)}')
    xg_loads()
    E(f"""s_lshr_b32 s{t0}, s2, 3
    s_lshl_b32 s{t0}, s{t0}, 2
    s_add_u32 s{t0}, s{t0}, s{sNT}
    s_mul_i32 s{t0}, s{t0}, 6400
    s_mov_b32 exec_hi, 0x3ffff
    buffer_load_dword v{a4}, v{a3}, {sr(SW,4)}, s{t0} offen
    s_mov_b32 exec_hi, -1
    s_k2:""")
    flag_wait('s_fd1', F_D1)
    stamp(20)
    wo_issue('s_wa', 0, 3, T_W)
    E(f"""s_cmp_eq_u32 s{sMODE}, 0
    s_cbranch_scc0 s_wo
    s_mov_b32 s{t4}, {WS_Z+Z_C1}
    s_mov_b32 s{t2}, 0x05040100
    s_mov_b32 s{t3}, 0x07060302
    v_lshlrev_b32 v{a3}, 7, v{vL}
    v_lshlrev_b32 v{a7}, 2, v{vL}""")
    spin('s_c1', lambda: E(f'buffer_load_dword v{a2}, v{a3}, {sr(SWS,4)}, s{t4} offen sc1'),
         lambda: E(f's_waitcnt vmcnt(0)\nv_cmp_ne_u32 vcc, 16, v{a2}\ns_nop 1\ns_cmp_eq_u64 vcc, 0'), first_issued=False, sleep=8)
    stamp(21)
    E(f"""s_cmp_lt_u32 s2, 216
    s_cbranch_scc0 s_wo
    s_lshl_b32 s{t0}, s2, 4
    s_add_u32 s{t0}, s{t0}, {WS_Z+Z_H}
    s_add_u32 s{t1}, s{t0}, 6912
    v_and_b32 v{a1}, 12, v{a7}
    buffer_load_dword v{H}, v{a1}, {sr(SWS,4)}, s{t0} offen sc1
    buffer_load_dword v{H+1}, v{a1}, {sr(SWS,4)}, s{t0} offen offset:3456 sc1
    buffer_load_dword v{H+2}, v{a1}, {sr(SWS,4)}, s{t1} offen sc1
    buffer_load_dword v{H+3}, v{a1}, {sr(SWS,4)}, s{t1} offen offset:3456 sc1""")
    for q in range(4):
        a, b = F2+4*q, F2+4*q+2
        E(f"""v_perm_b32 v{F1+4*q}, v{b}, v{a}, s{t2}
        v_perm_b32 v{F1+4*q+1}, v{b}, v{a}, s{t3}
        v_perm_b32 v{F1+4*q+2}, v{b+1}, v{a+1}, s{t2}
        v_perm_b32 v{F1+4*q+3}, v{b+1}, v{a+1}, s{t3}""")
    E(f"""s_waitcnt vmcnt(0)
    v_mul_f32 v{a1}, {fbits(-LOG2E)}, v{H}
    v_mul_f32 v{a2}, {fbits(-LOG2E)}, v{H+1}
    v_exp_f32 v{a1}, v{a1}
    v_exp_f32 v{a2}, v{a2}
    v_pk_mul_f32 {r(H,2)}, {r(H,2)}, {r(H+2,2)}
    v_add_f32 v{a1}, 1.0, v{a1}
    v_add_f32 v{a2}, 1.0, v{a2}
    v_rcp_f32 v{a1}, v{a1}
    v_rcp_f32 v{a2}, v{a2}
    v_mov_b64 {r(H+2,2)}, 0
    v_mul_f32 v{a1}, v{a1}, v{H}
    v_mul_f32 v{a2}, v{a2}, v{H+1}
    v_cvt_pk_bf16_f32 v{a1}, v{a1}, v{a2}
    v_mov_b64 {r(H,2)}, 0""")
    for q in range(4): E(f'v_readlane_b32 s{sXP+q}, v{a1}, {q}')
    E(f"""s_and_b32 s{t0}, s2, 15
    s_mul_i32 s{t0}, s{t0}, 2560""")
    for q in range(4):
        for c in range(4): E(f'v_dot2c_f32_bf16 v{H+c}, s{sXP+q}, v{F1+4*q+c}')
    E(f"""s_mul_i32 s{t1}, s{sNT}, 160
    s_add_u32 s{t0}, s{t0}, s{t1}
    s_add_u32 s{t0}, s{t0}, {WS_Z+Z_Y}
    s_mov_b32 exec_hi, 0xff""")
    for c in range(4): E(f'buffer_atomic_add_f32 v{H+c}, v{a7}, {sr(SWS,4)}, s{t0} offen offset:{640*c}')
    E('s_mov_b32 exec_hi, -1')
    E('s_wo:')
    stamp(22)
    flag_wait('s_fd', F_D)
    stamp(23)
    wo_issue('s_wb', 3, 5, T_W+61440)
    E(f"""s_mov_b32 s{t0}, s{sKR}
    v_lshlrev_b32 v{a3}, 7, v{vL}
    s_mov_b64 exec, 0xfffff
    buffer_load_dword v{a4}, v{a3}, {sr(SWS,4)}, s{t0} offen sc1
    s_mov_b64 exec, -1""")
    E('s_waitcnt vmcnt(0)')
    E(f's_cmp_lt_u32 s2, 216\ns_cbranch_scc0 s_na\ns_cmp_eq_u32 s{sMODE}, 0\ns_cbranch_scc0 s_na')
    arrive(Z_C2)
    E('s_na:')
    stamp(24)
    E(f"""s_cmp_lt_u32 s{sCB}, 64
    s_cbranch_scc0 s_ny
    v_min_u32 v{a3}, 53, v{vL}
    v_lshlrev_b32 v{a3}, 7, v{a3}
    s_mov_b32 s{t4}, {WS_Z+Z_C2}""")
    spin('s_c2', lambda: E(f'buffer_load_dword v{a2}, v{a3}, {sr(SWS,4)}, s{t4} offen sc1'),
         lambda: E(f's_waitcnt vmcnt(0)\nv_cmp_ne_u32 vcc, 16, v{a2}\ns_nop 1\ns_cmp_eq_u64 vcc, 0'), first_issued=False, sleep=16)
    E(f"""v_and_b32 v{a0}, 15, v{vL}
    v_mul_u32_u24 v{a0}, 2560, v{a0}
    v_lshrrev_b32 v{a7}, 4, v{vL}
    v_mul_u32_u24 v{a1}, 640, v{a7}
    v_add_u32 v{a0}, v{a0}, v{a1}
    s_mul_i32 s{t3}, s{sJ}, 80
    s_mul_i32 s{t2}, s{sNT}, 20
    s_add_u32 s{t3}, s{t3}, s{t2}
    s_add_u32 s{t3}, s{t3}, {WS_Z+Z_Y}
    s_lshl_b32 s{t2}, s{t2}, 2
    buffer_load_dwordx4 {r(YT,4)}, v{a0}, {sr(SWS,4)}, s{t3} offen sc1
    buffer_load_dword v{YT+4}, v{a0}, {sr(SWS,4)}, s{t3} offen offset:16 sc1""")
    E(f"""s_and_b32 s{t0}, s{sKEY}, 0xffff8000
    s_or_b32 s{t0}, s{t0}, 0x4000
    s_ashr_i32 s{t1}, s{t0}, 31
    s_not_b32 s{t1}, s{t1}
    s_or_b32 s{t1}, s{t1}, 0x80000000
    s_xor_b32 s{t0}, s{t0}, s{t1}
    v_mov_b32 v{a2}, s{t0}
    v_mul_f32 v{a2}, {fbits(-LOG2E)}, v{a2}
    v_exp_f32 v{a2}, v{a2}
    v_lshl_add_u32 v{a7}, v{a7}, 2, s{t2}
    v_add_f32 v{a2}, 1.0, v{a2}
    v_rcp_f32 v{a2}, v{a2}
    s_waitcnt vmcnt(0)""")
    for sh in (8, 4, 2, 1):
        for i in range(5): E(f'v_add_f32_dpp v{YT+i}, v{YT+i}, v{YT+i} row_ror:{sh}')
    for i in range(5): E(f'v_mul_f32 v{YT+i}, v{YT+i}, v{a2}\nds_write_b32 v{a7}, v{YT+i} offset:{T_Y+16*i}')
    E('s_ny:')
    a_addr()
    tail_setup()
    stamp(26)
    E(f's_setprio {int(env("FPRIO", "0"))}\ns_barrier')
    stamp(41, True)
    for p in range(4):
        for st_ in range(2):
            for mt in range(5): rdA(p, AP[p], st_, mt)
    stamp(27)
    E('s_branch t_join')

def kernel():
    E(f'.globl {K}\n.p2align 8\n.type {K},@function\n{K}:')
    E(f'''s_cmp_ge_u32 s2, 256
    s_cbranch_scc1 k_end
    s_load_dwordx16 s[64:79], s[0:1], 0
    s_load_dwordx8 s[80:87], s[0:1], 64
    s_load_dwordx4 s[88:91], s[0:1], 96''')
    if STAMPS:
        E('s_memrealtime s[96:97]\ns_memtime s[98:99]')
    if 'nopf' not in OPT:
        E(f'''s_getpc_b64 s[50:51]
        k_pc:
        s_bfe_u32 s{t0}, s2, 0x30003
        v_lshrrev_b32 v2, 3, v0
        v_lshl_add_u32 v2, v2, 3, s{t0}
        v_lshlrev_b32 v2, 7, v2
        v_min_u32 v2, k_last-k_pc-4, v2
        s_mov_b32 exec_lo, 0x01010101
        s_mov_b32 exec_hi, 0x01010101
        global_load_dword v252, v2, s[50:51]
        s_mov_b64 exec, -1''')
    front(); qproj(); attention(); tail(); idle_setup(); front2(); service(); E('k_last:'); exact()

def main(path):
    ref = open(f'cdna_kernels/{NAME}.s.ref').read().splitlines()
    head = [l for l in ref if l.startswith(';') and '@launch' not in l]
    head += ['; @launch grid=(256,1,1) block=(512,1,1) lds=163840']
    kernel()
    body = '\n'.join(L)
    txt = '\n'.join(head) + '\n.amdgcn_target "amdgcn-amd-amdhsa--gfx950"\n.text\n' + body + f'''
.section .rodata,"a"
.p2align 6
.amdhsa_kernel {K}
  .amdhsa_next_free_vgpr 256
  .amdhsa_next_free_sgpr 102
  .amdhsa_accum_offset 256
  .amdhsa_group_segment_fixed_size 0
  .amdhsa_kernarg_size 112
  .amdhsa_user_sgpr_count 2
  .amdhsa_user_sgpr_kernarg_segment_ptr 1
  .amdhsa_system_sgpr_workgroup_id_x 1
  .amdhsa_float_denorm_mode_32 3
.end_amdhsa_kernel
'''
    open(path, 'w').write(txt)
if __name__ == '__main__':
    main(sys.argv[1] if len(sys.argv) > 1 else 'f6.s')
```
